```python
import torch

def _softmax(x, axis=-1):
    return torch.softmax(x, dim=axis)
def _gelu(x):
    return torch.nn.functional.gelu(x, approximate="tanh")
def _silu(x):
    return torch.nn.functional.silu(x)
def _sigmoid(x):
    return torch.sigmoid(x)
def _layernorm(x, axis=-1, eps=1e-5):
    m = x.mean(dim=axis, keepdim=True)
    v = x.var(dim=axis, keepdim=True, unbiased=False)
    return (x - m) / torch.sqrt(v + eps)
def _scatter_add(tgt, idx, src, axis=0):
    return tgt.clone().index_add_(axis, idx, src)
def _segment_sum(src, seg, n):
    out = torch.zeros((n,) + src.shape[1:], dtype=src.dtype)
    return out.index_add_(0, seg, src)
def _pad(x, pw):
    flat = tuple(v for pair in reversed(pw) for v in pair)
    return torch.nn.functional.pad(x, flat)

kernel_name = 'standalone__edge_featured_mpnn_gatedgcn__graph'

def setup_inputs():

    _w = (lambda a: (lambda t: t.to(torch.bfloat16) if t.is_floating_point() else t)(torch.as_tensor(a)))
    N, deg, D, De = 10000, 16, 128, max(4, 1)
    E = N * deg
    return {
        "x": _w((lambda *s: torch.randn(*s, dtype=torch.bfloat16) * 0.4)(N, D)),
        "e_attr": _w((lambda *s: torch.randn(*s, dtype=torch.bfloat16) * 0.8)(E, De)),
        "src": _w((lambda lo, hi, *s: torch.randint(lo, hi, s))(0, N, E).to(torch.int64)),
        "dst": _w((lambda lo, hi, *s: torch.randint(lo, hi, s))(0, N, E).to(torch.int64)),
        "w_a": _w((lambda *s: torch.randn(*s, dtype=torch.bfloat16) * 0.4)(D, D)),
        "w_b": _w((lambda *s: torch.randn(*s, dtype=torch.bfloat16) * 0.4)(D, D)),
        "w_c": _w((lambda *s: torch.randn(*s, dtype=torch.bfloat16) * 0.8)(De, D)),
        "w_u": _w((lambda *s: torch.randn(*s, dtype=torch.bfloat16) * 0.05)(D, D)),
        "w_v": _w((lambda *s: torch.randn(*s, dtype=torch.bfloat16) * 0.05)(D, D)),
    }

def reference(x, e_attr, src, dst, w_a, w_b, w_c, w_u, w_v):
    N, D = x.shape
    hv = x @ w_v
    g = x[dst] @ w_a + x[src] @ w_b + e_attr @ w_c
    eta = _sigmoid(g)
    denom = _segment_sum(eta, dst, N) + 1e-6
    eta_n = eta / denom[dst]
    agg = _segment_sum(eta_n * hv[src], dst, N)
    z = x @ w_u + agg
    relu_z = torch.where(z > 0, z, 0 * z)
    return x + relu_z
```

```python
import re, sys
TRANS = ("v_exp_f32","v_log_f32","v_rcp_f32","v_rsq_f32","v_sqrt_f32","v_sin_f32","v_cos_f32")
def regs(tok):
    tok = tok.strip().lstrip("-").replace("|","")
    m = re.fullmatch(r"([vsa])(\d+)", tok)
    if m: return {(m.group(1), int(m.group(2)))}
    m = re.fullmatch(r"([vsa])\[(\d+):(\d+)\]", tok)
    if m: return {(m.group(1), i) for i in range(int(m.group(2)), int(m.group(3))+1)}
    if tok == "vcc": return {("s","vcc")}
    if tok in ("vcc_lo","vcc_hi"): return {("s","vcc")}
    if tok in ("exec","exec_lo","exec_hi"): return {("s","exec")}
    if tok == "m0": return {("s","m0")}
    return set()
class I:
    def __init__(s, text, ln):
        s.text = text; s.ln = ln
        p = text.split(None, 1); s.op = p[0]
        rest = p[1] if len(p) > 1 else ""
        ops = [o.strip() for o in rest.split(",")]
        if ops:
            fixed = []; depth = 0
            rest2 = re.sub(r"\b(op_sel|op_sel_hi|neg_lo|neg_hi|quad_perm):\[[^\]]*\]", "", rest)
            ops = [o.strip().split(" ")[0] for o in rest2.split(",") if o.strip()]
        s.ops = ops
        op = s.op
        s.valu = op.startswith("v_"); s.mfma = op.startswith("v_mfma") or op.startswith("v_smfmac")
        s.vmem = op.startswith(("buffer_","global_","flat_")); s.ds = op.startswith("ds_")
        s.salu = op.startswith("s_")
        s.dpp = "_dpp" in op or "row_" in text or "quad_perm" in text
        s.lds_dma = s.vmem and (" lds" in text or "_lds_" in op)
        R = [regs(o) for o in ops]
        s.w = set(); s.r = set(); s.srcc = set(); s.sdata = set()
        if s.valu:
            nd = 1
            if op.startswith(("v_add_co","v_sub_co","v_addc_co","v_subb_co","v_subrev_co","v_div_scale")): nd = 2
            if op == "v_nop": nd = 0
            for x in R[:nd]: s.w |= x
            for x in R[nd:]: s.r |= x
            if op.startswith(("v_fmac","v_mac","v_pk_fmac","v_writelane","v_smfmac")) or s.dpp: s.r |= R[0]
            if op.startswith("v_cmpx"): s.w |= {("s","exec")}
            if op.startswith("v_permlane") or op.startswith("v_swap"): s.w |= R[1]; s.r |= R[0]
            if s.mfma: s.srcc = R[3] if op.startswith("v_mfma") else R[0]
        elif s.vmem:
            if s.lds_dma:
                for x in R: s.r |= x
                s.r |= {("s","m0")}
            elif "load" in op:
                s.w |= R[0]
                for x in R[1:]: s.r |= x
            else:
                for x in R: s.r |= x
                if "x3" in op or "x4" in op: s.sdata = R[0] if op.startswith("buffer") else R[1]
        elif s.ds:
            if "read" in op or "rtn" in op or "permute" in op or "swizzle" in op:
                s.w |= R[0]
                for x in R[1:]: s.r |= x
            else:
                for x in R: s.r |= x
        elif s.salu:
            if op.startswith(("s_cmp","s_cbranch","s_branch","s_waitcnt","s_nop","s_barrier","s_endpgm","s_setprio","s_bitcmp","s_sleep")):
                for x in R: s.r |= x
            else:
                if R: s.w |= R[0]
                for x in R[1:]: s.r |= x
                if "saveexec" in op: s.w |= {("s","exec")}
        s.ws = 1
        if op == "s_nop": s.ws = int(ops[0], 0) + 1
        s.passes = 0
        if s.mfma:
            s.passes = 8 if ("32x32x16" in op or "32x32x32" in op or "32x32x8" in op or "_4b" in op) else (2 if "_16b" in op else 4)
            if op.startswith("v_smfmac"): s.passes = 8 if "32x32" in op else 4
def need(p, c):
    n = 0
    vw = {x for x in p.w if x[0] in "va"}; sw = {x for x in p.w if x[0] == "s"}
    if p.mfma:
        t = {2:0,4:1,8:2,16:3}[p.passes]
        if c.mfma:
            if vw & c.srcc:
                same = (vw == c.srcc and p.passes == c.passes and p.op == c.op)
                n = max(n, ([2,0,0,0] if same else [4,6,10,18])[t])
            if vw & (c.r - c.srcc): n = max(n, [5,8,12,20][t])
            if (vw & c.w) and not (vw & c.srcc): n = max(n, [5,8,12,20][t])
        elif c.valu or c.vmem or c.ds:
            if vw & (c.r | c.w): n = max(n, [5,8,12,20][t])
            if p.srcc & c.w: n = max(n, [1,3,7,15][t])
    elif p.valu:
        if c.mfma and vw & c.r: n = max(n, 2)
        if c.mfma and ("s","exec") in sw: n = max(n, 4)
        if c.valu:
            if p.op.startswith(TRANS) and not c.op.startswith(TRANS) and vw & c.r: n = max(n, 1)
            if c.dpp and vw & c.r: n = max(n, 2)
            if c.dpp and ("s","exec") in sw: n = max(n, 5)
            if c.op.startswith(("v_readlane","v_readfirstlane")) and vw & c.r: n = max(n, 1)
            if c.op.startswith(("v_readlane","v_readfirstlane","v_writelane")) and ("s","exec") in sw: n = max(n, 4)
            if c.op.startswith("v_permlane") and vw & c.r: n = max(n, 2)
            if sw & c.r: n = max(n, 4 if c.op.startswith(("v_readlane","v_writelane")) else 2)
            if c.op.startswith("v_cndmask") and len(c.ops) == 3 and ("s","vcc") in sw: n = max(n, 2)
            if "sdwa" in p.op and "dst_sel" in p.text and "dst_sel:DWORD" not in p.text and vw & (c.r|c.w): n = max(n, 1)
        if c.vmem and sw & c.r: n = max(n, 5)
    elif p.vmem and p.sdata:
        if p.sdata & c.w: n = max(n, 2 if c.valu else 1)
    elif p.salu:
        if ("s","m0") in sw and (c.lds_dma or "addtid" in c.op): n = max(n, 1)
    return n
def check(src):
    ins = []; labels = {}
    for ln, raw in enumerate(src.split("\n"), 1):
        t = raw.split(";")[0].split("//")[0].strip()
        if not t or t.startswith("."): continue
        if t.endswith(":"): labels[t[:-1]] = len(ins); continue
        if not re.match(r"^[a-z]+_", t): continue
        ins.append(I(t, ln))
    def succ(i):
        o = ins[i].op
        if o == "s_endpgm": return []
        if o == "s_branch": return [labels[ins[i].ops[0]]]
        if o.startswith("s_cbranch"): return [labels[ins[i].ops[0]], i+1]
        return [i+1]
    bad = []
    for i, p in enumerate(ins):
        if not (p.valu or p.sdata or ("s","m0") in p.w): continue
        lim = 20 if p.mfma else 5
        st = [(j, 0) for j in succ(i)]; seen = {}
        while st:
            j, d = st.pop()
            if j >= len(ins) or d >= lim or seen.get(j, 99) <= d: continue
            seen[j] = d
            n = need(p, ins[j])
            if n > d: bad.append((p.ln, p.text, ins[j].ln, ins[j].text, n, d))
            for k in succ(j): st.append((k, d + ins[j].ws))
    for b in sorted(set(bad)): print("HAZARD: L%d `%s` -> L%d `%s` need %d have %d" % b)
    return len(bad)
if __name__ == "__main__":
    n = check(open(sys.argv[1]).read()); print("hazards:", n)
```

```python
import sys, struct
sys.path.insert(0, "exp")
import hz
def f2u(x): return struct.unpack("<I", struct.pack("<f", x))[0]
NL2E = f2u(-1.4426950408889634)
WS_TABH = 0x280000; WS_REC = 0x500000; RSTR = 30080; WS_OFFS = 0x700000; WS_IMG = 0x708000
NBIN = 64; NBLK = 90; K1WG = NBIN + 2*NBLK + 1
class A:
    def __init__(s): s.l = []
    def __call__(s, t):
        for x in t.strip("\n").split("\n"):
            x = x.strip()
            if x: s.l.append(x if x.endswith(":") else "  " + x)
    def text(s): return "\n".join(s.l) + "\n"
def vr(a, n): return f"v[{a}:{a+n-1}]" if n > 1 else f"v{a}"

def k1(P):
    o = A()
    o(f"""
    s_cmp_ge_u32 s2, {K1WG}
    s_cbranch_scc1 K1END
    s_load_dwordx2 s[4:5], s[0:1], 88
    s_cmp_lt_u32 s2, {NBIN}
    s_cbranch_scc1 K1BIN
    s_cmp_eq_u32 s2, {K1WG-1}
    s_cbranch_scc1 K1MISC
    """)
    WB, WV, XS = 0, 16384, 32768
    o(f"""
    s_load_dwordx2 s[8:9], s[0:1], 0
    s_load_dwordx2 s[12:13], s[0:1], 40
    s_load_dwordx2 s[14:15], s[0:1], 64
    v_lshrrev_b32 v1, 6, v0
    s_sub_u32 s3, s2, {NBIN}
    v_readfirstlane_b32 s20, v1
    s_and_b32 s21, s3, 1
    s_lshr_b32 s22, s3, 1
    s_mul_i32 s22, s22, {112*256}
    s_lshl_b32 s23, s21, 7
    v_lshlrev_b32 v2, 1, v0
    v_and_b32 v2, 0x20, v2
    v_and_or_b32 v2, v0, 64, v2
    v_lshlrev_b32 v3, 4, v0
    v_and_b32 v3, 0x70, v3
    v_xor_b32 v2, v2, v3
    v_lshrrev_b32 v3, 3, v0
    v_lshl_or_b32 v2, v3, 8, v2
    v_add_u32 v2, s23, v2
    v_add_u32 v3, 0x4000, v2
    v_lshrrev_b32 v4, 4, v0
    v_xor_b32 v5, v4, v0
    v_and_b32 v5, 15, v5
    v_lshlrev_b32 v5, 4, v5
    v_lshl_or_b32 v4, v4, 8, v5
    v_add_u32 v4, s22, v4
    v_add_u32 v5, 0x2000, v4
    v_add_u32 v6, 0x4000, v4
    v_add_u32 v7, 0x6000, v4
    s_lshl_b32 s24, s20, 10
    s_mov_b32 s10, 2560000
    s_mov_b32 s11, 0x00020000
    s_mov_b32 m0, s24
    s_waitcnt lgkmcnt(0)
    global_load_lds_dwordx4 v2, s[12:13]
    s_add_u32 m0, s24, {WV}
    s_mul_i32 s25, s21, {WS_TABH}
    global_load_lds_dwordx4 v2, s[14:15]
    s_add_u32 m0, s24, {XS}
    s_add_u32 s16, s4, s25
    buffer_load_dwordx4 v4, s[8:11], 0 offen lds
    s_addc_u32 s17, s5, 0
    s_add_u32 m0, s24, {XS+16384}
    s_mov_b32 s18, 2560000
    buffer_load_dwordx4 v6, s[8:11], 0 offen lds
    s_add_u32 m0, s24, {WB+8192}
    s_mov_b32 s19, 0x00020000
    global_load_lds_dwordx4 v3, s[12:13]
    s_add_u32 m0, s24, {WV+8192}
    s_nop 0
    global_load_lds_dwordx4 v3, s[14:15]
    s_add_u32 m0, s24, {XS+8192}
    s_nop 0
    buffer_load_dwordx4 v5, s[8:11], 0 offen lds
    s_add_u32 m0, s24, {XS+24576}
    s_cmp_ge_u32 s20, 4
    s_cbranch_scc1 K1G1
    buffer_load_dwordx4 v7, s[8:11], 0 offen lds
    K1G1:
    s_and_b32 s26, s20, 3
    s_lshr_b32 s27, s20, 2
    v_and_b32 v1, 63, v0
    v_lshrrev_b32 v2, 4, v1
    v_bfe_u32 v3, v1, 2, 2
    v_lshl_or_b32 v3, v2, 3, v3
    v_bfe_u32 v4, v1, 3, 2
    v_xor_b32 v4, s26, v4
    v_lshlrev_b32 v4, 5, v4
    v_lshl_or_b32 v3, v3, 7, v4
    v_and_b32 v4, 3, v1
    v_lshl_or_b32 v8, v4, 3, v3
    v_and_b32 v4, 15, v1
    v_xor_b32 v5, v4, v2
    v_lshlrev_b32 v5, 4, v5
    v_lshl_or_b32 v5, v4, 8, v5
    s_lshl_b32 s28, s27, 14
    v_add_u32 v10, s28, v5
    v_xor_b32 v11, 64, v10
    v_xor_b32 v12, 0x80, v10
    v_xor_b32 v13, 0xc0, v10
    s_lshl_b32 s29, s26, 6
    s_add_u32 s28, s28, s22
    s_add_u32 s28, s28, s29
    v_lshlrev_b32 v2, 10, v2
    v_lshl_or_b32 v2, v4, 2, v2
    v_add_u32 v9, s28, v2
    s_mov_b32 s30, {NL2E}
    s_mov_b32 s31, {NL2E}
    s_mov_b32 s32, 0x07060100
    s_mov_b32 s33, 0x07060302
    s_waitcnt vmcnt(0)
    s_barrier
    """)
    FB, FV, XF, D = 16, 32, [48, 64], [80, 88]
    def xread(t):
        for kk in range(4): o(f"ds_read_b128 {vr(XF[t&1]+4*kk,4)}, v{10+kk} offset:{XS+4096*t}")
    for kk in range(4):
        for j in range(2): o(f"ds_read_b64_tr_b16 {vr(FB+4*kk+2*j,2)}, v8 offset:{WB+4096*kk+512*j}")
    xread(0)
    o("s_waitcnt lgkmcnt(8)")
    for kk in range(4):
        for j in range(2): o(f"ds_read_b64_tr_b16 {vr(FV+4*kk+2*j,2)}, v8 offset:{WV+4096*kk+512*j}")
    o("s_waitcnt lgkmcnt(8)")
    xread(1)
    o("s_waitcnt lgkmcnt(4)")
    def mm(t):
        d = D[t&1]
        for kk in range(4):
            for (dd, F) in ((d, FB), (d+4, FV)):
                o(f"v_mfma_f32_16x16x32_bf16 {vr(dd,4)}, {vr(XF[t&1]+4*kk,4)}, {vr(F+4*kk,4)}, {'0' if kk==0 else vr(dd,4)}")
    def epi(t):
        d = D[t&1]
        o(f"""
        v_pk_mul_f32 {vr(d,2)}, {vr(d,2)}, s[30:31]
        v_pk_mul_f32 {vr(d+2,2)}, {vr(d+2,2)}, s[30:31]
        v_cvt_pk_bf16_f32 v{d}, v{d}, v{d+1}
        v_cvt_pk_bf16_f32 v{d+2}, v{d+2}, v{d+3}
        """)
        for i in range(4): o(f"v_perm_b32 v{d+4+i}, v{d+4+i}, v{d+(i&2)}, s{32+(i&1)}")
        for i in range(4): o(f"buffer_store_dword v{d+4+i}, v9, s[16:19], 0 offen offset:{256*i}")
        o("v_add_u32 v9, 0x1000, v9")
    mm(0); xread(2); o("s_waitcnt lgkmcnt(4)")
    mm(1); xread(3); epi(0); o("s_waitcnt lgkmcnt(4)")
    mm(2); epi(1)
    o("s_cmp_eq_u32 s27, 1\ns_cbranch_scc1 K1G2\ns_waitcnt lgkmcnt(0)")
    mm(3); epi(2); epi(3)
    o("s_endpgm\nK1G2:"); epi(2); o("s_endpgm")
    o(f"""
    K1MISC:
    s_load_dwordx2 s[8:9], s[0:1], 48
    v_lshrrev_b32 v1, 6, v0
    s_nop 0
    v_readfirstlane_b32 s20, v1
    s_cmp_ge_u32 s20, 2
    s_cbranch_scc1 K1END
    v_and_b32 v1, 63, v0
    v_and_b32 v2, 15, v0
    v_lshlrev_b32 v2, 3, v2
    s_lshl_b32 s21, s20, 7
    v_add_u32 v2, s21, v2
    s_waitcnt lgkmcnt(0)
    global_load_dwordx2 v[8:9], v2, s[8:9]
    global_load_dwordx2 v[10:11], v2, s[8:9] offset:256
    global_load_dwordx2 v[12:13], v2, s[8:9] offset:512
    global_load_dwordx2 v[14:15], v2, s[8:9] offset:768
    s_mul_i32 s22, s20, {WS_TABH}
    s_add_u32 s22, s22, 2560000
    v_lshlrev_b32 v3, 2, v1
    v_add_u32 v3, s22, v3
    v_mov_b32 v4, 0x7149
    global_store_dword v3, v4, s[4:5]
    s_lshl_b32 s22, s20, 12
    s_add_u32 s22, s22, {WS_IMG}
    v_lshlrev_b32 v3, 4, v1
    v_add_u32 v3, s22, v3
    v_bfe_u32 v4, v1, 4, 1
    v_lshrrev_b32 v5, 5, v1
    v_mov_b32 v6, {NL2E}
    v_cmp_eq_u32 vcc, v4, v5
    v_lshrrev_b32 v4, 4, v1
    v_and_b32 v5, 15, v1
    v_cndmask_b32 v6, 0, v6, vcc
    v_lshlrev_b32 v4, 2, v4
    v_sub_u32 v4, v5, v4
    v_mov_b32 v5, 0x3f80
    """)
    for j in range(4): o(f"v_cmp_eq_u32 vcc, {j}, v4\ns_nop 1\nv_cndmask_b32 v{40+j}, 0, v5, vcc")
    o("global_store_dwordx4 v3, v[40:43], s[4:5]\ns_waitcnt vmcnt(2)")
    for k in range(4):
        for s in range(4):
            src = 8+2*k+(s>>1)
            o(f"v_lshlrev_b32 v{16+4*k+s}, 16, v{src}" if s%2 == 0 else f"v_and_b32 v{16+4*k+s}, 0xffff0000, v{src}")
            o(f"v_mul_f32 v{16+4*k+s}, v6, v{16+4*k+s}")
    for s in range(4):
        for kk in range(2): o(f"v_cvt_pk_bf16_f32 v{32+2*s+kk}, v{16+8*kk+s}, v{16+8*kk+4+s}")
    o("""
    global_store_dwordx4 v3, v[32:35], s[4:5] offset:1024
    global_store_dwordx4 v3, v[36:39], s[4:5] offset:2048
    s_endpgm
    """)
    CNT, ST = 32768, 33280
    DS, SR, EE, RK, AD = 8, 14, 20, 30, 36
    o(f"""
    K1BIN:
    s_load_dwordx2 s[6:7], s[0:1], 8
    s_load_dwordx4 s[8:11], s[0:1], 16
    v_lshlrev_b32 v1, 2, v0
    v_mov_b32 v2, 0
    ds_write_b32 v1, v2 offset:{CNT}
    v_add_u32 v2, 0x1000, v1
    v_lshlrev_b32 v3, 3, v0
    v_add_u32 v4, 0x2000, v3
    v_add_u32 v5, 0x4000, v3
    v_cmp_gt_u32 s[20:21], {2500-2048}, v0
    """.replace(f"v_cmp_gt_u32 s[20:21], {2500-2048}, v0", f"v_cmp_gt_u32 vcc, {2500-2048}, v0"))
    o(f"""
    s_mul_i32 s12, s2, 10000
    s_add_u32 s13, s12, s12
    s_add_u32 s12, s12, 4096
    s_add_u32 s13, s13, 4096
    s_mov_b64 s[20:21], vcc
    s_waitcnt lgkmcnt(0)
    s_add_u32 s10, s10, s12
    s_addc_u32 s11, s11, 0
    """)
    for p in range(4): o(f"global_load_dword v{DS+p}, v1, s[10:11] offset:{2048*p-4096}")
    o(f"""
    s_mov_b64 exec, s[20:21]
    global_load_dword v{DS+4}, v2, s[10:11]
    s_mov_b64 exec, -1
    s_add_u32 s8, s8, s12
    s_addc_u32 s9, s9, 0
    s_add_u32 s6, s6, s13
    s_addc_u32 s7, s7, 0
    """)
    for p in range(4): o(f"global_load_dword v{SR+p}, v1, s[8:9] offset:{2048*p-4096}")
    for p in range(4): o(f"global_load_dwordx2 {vr(EE+2*p,2)}, v{3+(p>>1)}, s[6:7] offset:{4096*(p&1)-4096}")
    o(f"""
    s_mov_b64 exec, s[20:21]
    global_load_dword v{SR+4}, v2, s[8:9]
    global_load_dwordx2 {vr(EE+8,2)}, v5, s[6:7] offset:-4096
    s_mov_b64 exec, -1
    v_mov_b32 v6, 12
    v_and_b32 v7, 63, v0
    v_lshlrev_b32 v7, 3, v7
    s_mul_i32 s14, s2, {RSTR}
    s_add_u32 s14, s14, {WS_REC}
    s_add_u32 s16, s4, s14
    s_addc_u32 s17, s5, 0
    s_mov_b32 s18, 30000
    s_mov_b32 s19, 0x00020000
    s_lshl_b32 s14, s2, 9
    s_add_u32 s14, s14, {WS_OFFS}
    s_add_u32 s4, s4, s14
    s_addc_u32 s5, s5, 0
    s_barrier
    """)
    for p in range(5):
        if p == 4: o("s_mov_b64 exec, s[20:21]")
        o(f"""
        s_waitcnt vmcnt({14-p})
        v_lshlrev_b32 v{AD+p}, 2, v{DS+p}
        v_and_b32 v{AD+p}, 0x1fc, v{AD+p}
        ds_add_rtn_u32 v{RK+p}, v{AD+p}, v6 offset:{CNT}
        v_lshrrev_b32 v{DS+p}, 7, v{DS+p}
        """)
    o(f"""
    s_mov_b64 exec, -1
    s_waitcnt lgkmcnt(0)
    s_barrier
    ds_read_b64 v[42:43], v7 offset:{CNT}
    s_waitcnt lgkmcnt(0)
    v_add_u32 v44, v42, v43
    v_mov_b32 v45, v44
    s_nop 0
    v_add_u32_dpp v45, v44, v45 row_shr:1 row_mask:0xf bank_mask:0xf bound_ctrl:0
    s_nop 1
    v_add_u32_dpp v45, v44, v45 row_shr:2 row_mask:0xf bank_mask:0xf bound_ctrl:0
    s_nop 1
    v_add_u32_dpp v45, v44, v45 row_shr:3 row_mask:0xf bank_mask:0xf bound_ctrl:0
    s_nop 1
    v_add_u32_dpp v45, v45, v45 row_shr:4 row_mask:0xf bank_mask:0xf bound_ctrl:0
    s_nop 1
    v_add_u32_dpp v45, v45, v45 row_shr:8 row_mask:0xf bank_mask:0xf bound_ctrl:0
    s_nop 1
    v_add_u32_dpp v45, v45, v45 row_bcast:15 row_mask:0xa bank_mask:0xf
    s_nop 1
    v_add_u32_dpp v45, v45, v45 row_bcast:31 row_mask:0xc bank_mask:0xf
    v_sub_u32 v46, v45, v44
    v_sub_u32 v47, v45, v43
    ds_write_b64 v7, v[46:47] offset:{ST}
    """.replace("v_mov_b32 v45, v44\n    s_nop 0", "v_mov_b32 v45, v44\n    s_nop 1"))
    for p in range(5):
        if p == 4: o("s_mov_b64 exec, s[20:21]")
        o(f"ds_read_b32 v{AD+p}, v{AD+p} offset:{ST}")
    o(f"""
    v_cmp_gt_u32 vcc, 64, v0
    s_mov_b64 exec, -1
    v_lshl_or_b32 v46, v42, 16, v46
    v_lshl_or_b32 v47, v43, 16, v47
    s_waitcnt vmcnt(0)
    s_cbranch_vccz K1B1
    global_store_dwordx2 v7, v[46:47], s[4:5]
    K1B1:
    """)
    for p in range(5):
        if p == 4: o("s_mov_b64 exec, s[20:21]")
        o(f"""
        v_lshl_or_b32 v{DS+p}, v{DS+p}, 18, v{SR+p}
        s_waitcnt lgkmcnt({min(15, 4-p+2*p)})
        v_add_u32 v{AD+p}, v{AD+p}, v{RK+p}
        ds_write_b32 v{AD+p}, v{DS+p}
        ds_write2_b32 v{AD+p}, v{EE+2*p}, v{EE+2*p+1} offset0:1 offset1:2
        """)
    o(f"""
    s_mov_b64 exec, -1
    v_lshlrev_b32 v1, 4, v0
    v_add_u32 v2, 0x2000, v1
    v_add_u32 v3, 0x4000, v1
    v_add_u32 v4, 0x6000, v1
    s_waitcnt lgkmcnt(0)
    s_barrier
    """)
    for m in range(4): o(f"ds_read_b128 {vr(8+4*m,4)}, v1 offset:{8192*m}")
    for m in range(4): o(f"s_waitcnt lgkmcnt({3-m})\nbuffer_store_dwordx4 {vr(8+4*m,4)}, v{1+m}, s[16:19], 0 offen")
    o("K1END:\ns_endpgm")
    return o.text()

WA, WU, XS = 0, 16384, 32768
CONST, ZERO, CNT, ORDER, SRC = 53248, 53504, 53760, 54272, 54784
EB = SRC + 16384; AU = EB + 32768; LDS2 = AU + 80*528
aS, aE, aA, vOut = 0, 1, 2, 3
SEL, WCB, EA, IDX, ACC, CREP = 4, 8, 16, 24, 32, 40
L = [56, 72]; T = [88, 104]
vXa, vO1, vO2, vEb, vAb, vOb, vXc, JUNK = 120, 121, 122, 123, 124, 125, 126, 127
KP = "s[48:49]"
def k2(P):
    o = A()
    o(f"""
    s_cmp_ge_u32 s2, 256
    s_cbranch_scc1 K2END
    s_load_dwordx2 s[24:25], s[0:1], 88
    s_load_dwordx2 s[4:5], s[0:1], 0
    s_load_dwordx2 s[8:9], s[0:1], 32
    s_load_dwordx2 s[10:11], s[0:1], 56
    s_load_dwordx2 s[20:21], s[0:1], 72
    v_lshrrev_b32 v56, 6, v0
    s_and_b32 s30, s2, 1
    v_readfirstlane_b32 s33, v56
    s_bfe_u32 s31, s2, 0x20001
    s_lshl_b32 s31, s31, 5
    s_lshr_b32 s32, s2, 3
    s_add_u32 s31, s31, s32
    ; s30=h s31=b s32=wgq s33=w
    s_lshl_b32 s34, s31, 2
    s_add_u32 s34, s34, {WS_OFFS}
    v_lshrrev_b32 v57, 4, v0
    v_lshlrev_b32 v58, 9, v57
    v_add_u32 v58, s34, v58
    ; x voff
    s_lshl_b32 s35, s31, 8
    v_xor_b32 v59, v57, v0
    v_and_b32 v59, 15, v59
    v_lshlrev_b32 v59, 4, v59
    v_lshl_or_b32 v59, v57, 15, v59
    v_add_u32 v59, s35, v59
    v_add_u32 v60, 0x200000, v59
    ; W voff
    s_lshl_b32 s36, s30, 7
    v_lshlrev_b32 v61, 1, v0
    v_and_b32 v61, 0x20, v61
    v_and_or_b32 v61, v0, 64, v61
    v_lshlrev_b32 v62, 4, v0
    v_and_b32 v63, 0x70, v62
    v_xor_b32 v61, v61, v63
    v_lshrrev_b32 v63, 3, v0
    v_lshl_or_b32 v61, v63, 8, v61
    v_add_u32 v61, s36, v61
    s_lshl_b32 s37, s30, 12
    s_add_u32 s37, s37, {WS_IMG}
    v_and_b32 v63, 0x3f0, v62
    v_add_u32 v63, s37, v63
    s_lshl_b32 s38, s33, 10
    s_mov_b32 s6, 2560000
    s_mov_b32 s7, 0x00020000
    s_add_u32 m0, s38, {XS+16384}
    s_cmp_ge_u32 s33, 4
    s_waitcnt lgkmcnt(0)
    global_load_dword v64, v58, s[24:25]
    s_cbranch_scc1 K2A
    buffer_load_dwordx4 v60, s[4:7], 0 offen lds
    s_cmp_eq_u32 s33, 0
    s_cselect_b32 s39, {f2u(1e-6*2**31)}, 0
    v_lshlrev_b32 v65, 2, v0
    v_mov_b32 v66, s39
    ds_write_b32 v65, v66 offset:{CONST}
    K2A:
    s_add_u32 m0, s38, {XS}
    s_mul_i32 s39, s30, {WS_TABH}
    buffer_load_dwordx4 v59, s[4:7], 0 offen lds
    s_add_u32 m0, s38, {WA}
    s_add_u32 s16, s24, s39
    global_load_lds_dwordx4 v61, s[8:9]
    s_addc_u32 s17, s25, 0
    s_add_u32 m0, s38, {WU}
    s_mov_b32 s12, s16
    global_load_lds_dwordx4 v61, s[10:11]
    global_load_dwordx4 {vr(SEL,4)}, v63, s[24:25]
    global_load_dwordx4 {vr(WCB,4)}, v63, s[24:25] offset:1024
    global_load_dwordx4 {vr(WCB+4,4)}, v63, s[24:25] offset:2048
    s_mov_b32 s13, s17
    s_or_b32 s17, s17, {256<<16}
    s_mov_b32 s18, 10001
    s_mov_b32 s19, 0x00020000
    s_mov_b32 s22, 2560000
    s_mov_b32 s23, 0x00020000
    v_mov_b32 v68, 10000
    v_mov_b32 v69, 10000
    v_mov_b32 v70, 10000
    v_mov_b32 v71, 10000
    """)
    for j in range(8): o(f"v_mov_b32 v{EA+j}, 0")
    o(f"""
    v_add_u32 v65, {EB}, v62
    ds_write_b128 v62, v[68:71] offset:{SRC}
    ds_write_b128 v65, {vr(EA,4)}
    ds_write_b128 v65, {vr(EA,4)} offset:16384
    v_and_b32 v66, 15, v0
    v_mul_u32_u24 v67, 12, v66
    v_mul_u32_u24 v68, {RSTR}, v57
    v_add_u32 v68, v68, v67
    s_add_u32 s26, s24, {WS_REC}
    s_addc_u32 s27, s25, 0
    v_and_b32 v69, 63, v0
    s_mul_i32 s39, s32, 626
    s_mul_i32 s40, s33, 40
    s_add_u32 s39, s39, s40
    v_add_lshl_u32 v70, v69, s39, 7
    s_movk_i32 s40, 192
    s_movk_i32 s41, 384
    s_waitcnt vmcnt(6)
    v_lshrrev_b32 v71, 16, v64
    v_and_b32 v64, 0xffff, v64
    v_sub_u32 v71, v71, v67
    v_add_u32 v68, v68, v64
    v_cmp_lt_i32 s[50:51], 0, v71
    v_cmp_lt_i32 s[52:53], s40, v71
    v_cmp_lt_i32 s[54:55], s41, v71
    v_cmp_lt_i32 vcc, 576, v71
    s_mov_b64 exec, s[50:51]
    global_load_dwordx3 v[104:106], v68, s[26:27]
    s_mov_b64 exec, s[52:53]
    global_load_dwordx3 v[108:110], v68, s[26:27] offset:192
    s_mov_b64 exec, s[54:55]
    s_mov_b64 s[56:57], vcc
    s_cbranch_execz K2B
    global_load_dwordx3 v[112:114], v68, s[26:27] offset:384
    K2B:
    s_bfm_b64 exec, 40, 0
    global_load_dword v{JUNK}, v70, s[12:13]
    s_mov_b64 exec, -1
    """)
    o(f"""
    s_and_b32 s42, s33, 7
    s_lshr_b32 s43, s33, 3
    s_and_b32 s44, s33, 3
    v_lshrrev_b32 v56, 4, v69
    v_bfe_u32 v57, v69, 2, 2
    v_lshl_or_b32 v57, v56, 3, v57
    v_bfe_u32 v58, v69, 3, 2
    v_xor_b32 v59, s44, v58
    v_lshlrev_b32 v59, 5, v59
    v_lshl_or_b32 v57, v57, 7, v59
    v_and_b32 v59, 3, v69
    v_lshl_or_b32 v57, v59, 3, v57
    s_lshr_b32 s45, s42, 2
    s_lshl_b32 s46, s45, 14
    v_add_u32 v116, s46, v57
    v_xor_b32 v59, v66, v56
    v_lshlrev_b32 v59, 4, v59
    v_lshl_or_b32 v59, v66, 8, v59
    s_mul_i32 s46, s43, {3*4096}
    v_add_u32 v100, s46, v59
    v_xor_b32 v101, 64, v100
    v_xor_b32 v102, 0x80, v100
    v_xor_b32 v103, 0xc0, v100
    s_mul_i32 s46, s43, {48*528}
    s_lshl_b32 s47, s42, 6
    s_add_u32 s46, s46, s47
    s_add_u32 s46, s46, {AU}
    v_mul_u32_u24 v59, 528, v66
    v_lshl_add_u32 v59, v56, 4, v59
    v_add_u32 v117, s46, v59
    s_cmp_eq_u32 s45, 0
    s_cselect_b32 s58, {NL2E}, 1.0
    s_cselect_b32 s59, {f2u(-62.0)}, 0
    s_lshr_b32 s46, s33, 2
    s_sub_u32 s47, 3, s44
    s_cmp_ge_u32 s46, 2
    s_cselect_b32 s60, s47, s44
    s_add_u32 s46, s46, 3
    s_and_b32 s46, s46, 3
    s_lshl_b32 s46, s46, 2
    s_add_u32 s60, s60, s46
    s_lshl_b32 s60, s60, 4
    s_add_u32 s60, s60, {ORDER}
    s_sub_u32 s61, s47, s44
    s_add_u32 s61, s61, 4
    s_lshl_b32 s61, s61, 4
    v_lshl_add_u32 v{vO1}, v56, 2, s60
    v_bfe_u32 v59, v69, 2, 1
    v_lshrrev_b32 v60, 5, v69
    v_lshl_or_b32 v59, v59, 1, v60
    v_lshl_add_u32 v{vO2}, v59, 2, s60
    s_mov_b32 s62, {EB}
    v_lshl_add_u32 v{vEb}, v58, 3, s62
    v_lshlrev_b32 v{IDX+1}, 4, v66
    v_lshlrev_b32 v{IDX+3}, 4, v66
    v_lshlrev_b32 v{IDX+5}, 4, v66
    v_lshlrev_b32 v{IDX+7}, 4, v66
    v_add_u32 v{vAb}, {AU}, v{IDX+1}
    v_lshl_add_u32 v{vXc}, v66, 3, s36
    v_add_u32 v{vOb}, s35, v{vXc}
    v_lshlrev_b32 v118, 2, v69
    v_lshlrev_b32 v59, 4, v66
    v_lshl_or_b32 v59, v69, 8, v59
    v_lshl_or_b32 v119, v59, 16, v69
    s_lshl_b32 s46, s33, 8
    v_or_b32 v119, s46, v119
    s_mov_b32 s48, {f2u(2.0**31)}
    s_mov_b32 s49, {f2u(2.0**-31)}
    s_mov_b32 s64, 0x11111111
    s_mov_b32 s65, s64
    s_lshl_b64 s[66:67], s[64:65], 1
    s_lshl_b64 s[68:69], s[64:65], 2
    s_lshl_b64 s[70:71], s[64:65], 3
    s_movk_i32 s63, 528
    s_waitcnt vmcnt(3) lgkmcnt(0)
    s_barrier
    """)
    FW, XF, D = 40, [56, 72], [88, 92, 96]
    def xread(t):
        for kk in range(4): o(f"ds_read_b128 {vr(XF[t&1]+4*kk,4)}, v{100+kk} offset:{XS+4096*t}")
    def mm(t):
        for kk in range(4):
            o(f"v_mfma_f32_16x16x32_bf16 {vr(D[t],4)}, {vr(FW+4*kk,4)}, {vr(XF[t&1]+4*kk,4)}, {'0' if kk==0 else vr(D[t],4)}")
    def epi(t):
        for q in (0, 2): o(f"v_pk_fma_f32 {vr(D[t]+q,2)}, {vr(D[t]+q,2)}, s[58:59], s[58:59] op_sel:[0,0,1] op_sel_hi:[1,0,1]")
        o(f"ds_write_b128 v117, {vr(D[t],4)} offset:{16*528*t}")
    for kk in range(4):
        for j in range(2): o(f"ds_read_b64_tr_b16 {vr(FW+4*kk+2*j,2)}, v116 offset:{WA+4096*kk+512*j}")
    xread(0); o("s_waitcnt lgkmcnt(4)"); xread(1); o("s_waitcnt lgkmcnt(4)")
    mm(0)
    o("s_cmp_eq_u32 s43, 1\ns_cbranch_scc1 K2G1")
    xread(2); o("s_waitcnt lgkmcnt(4)"); mm(1); o("s_waitcnt lgkmcnt(0)"); mm(2); epi(0); o("s_nop 0"); epi(1); o("s_nop 0"); epi(2)
    o("s_branch K2G2\nK2G1:\ns_waitcnt lgkmcnt(0)"); mm(1); o("s_nop 2"); epi(0); o("s_nop 1"); epi(1)
    o("K2G2:")
    R = [104, 108, 112]
    o(f"""
    v_mov_b32 v56, 4
    s_waitcnt vmcnt(1)
    """)
    for p in range(3):
        o(f"""
        s_mov_b64 exec, s[{50+2*p}:{51+2*p}]
        {"s_cbranch_execz K2C" if p == 2 else ""}
        v_lshrrev_b32 v{60+p}, 16, v{R[p]}
        ds_add_rtn_u32 v{R[p]+3}, v{60+p}, v56 offset:{CNT}
        """)
    o(f"""
    s_mov_b64 exec, s[56:57]
    v_mov_b32 v57, 0x1000
    v_mov_b32 v58, {4*79}
    ds_write_b32 v58, v57 offset:{CNT}
    K2C:
    s_waitcnt lgkmcnt(0)
    """)
    for p in range(3):
        o(f"""
        s_mov_b64 exec, s[{50+2*p}:{51+2*p}]
        {"s_cbranch_execz K2D" if p == 2 else ""}
        v_min_u32 v{R[p]+3}, 188, v{R[p]+3}
        v_mad_u32_u24 v{60+p}, v{60+p}, 48, v{R[p]+3}
        v_lshl_add_u32 v{R[p]+3}, v{60+p}, 1, s62
        ds_write_b16 v{60+p}, v{R[p]} offset:{SRC}
        ds_write2_b32 v{R[p]+3}, v{R[p]+1}, v{R[p]+2} offset0:0 offset1:1
        """)
    o(f"""
    K2D:
    s_mov_b64 exec, -1
    s_lshl_b32 s46, s33, 4
    s_sub_u32 s47, s46, 16
    s_waitcnt lgkmcnt(0)
    s_barrier
    ds_read_b32 v56, v118 offset:{CNT}
    ds_read_b32 v57, v118 offset:{CNT+256}
    v_add_u32 v60, {(64<<24) + 64}, v119
    s_waitcnt lgkmcnt(0)
    v_max_u32 v58, v56, v57
    v_cmp_lt_i32 s[50:51], s46, v56
    v_cmp_lt_i32 s[52:53], s46, v57
    v_cmp_lt_i32 s[54:55], s47, v56
    v_cmp_lt_i32 s[56:57], s47, v57
    v_cmp_lt_u32 vcc, 192, v58
    s_andn2_b64 s[54:55], s[54:55], s[50:51]
    s_andn2_b64 s[56:57], s[56:57], s[52:53]
    s_and_b64 s[56:57], s[56:57], 0xffff
    s_bcnt1_i32_b64 s46, s[50:51]
    s_bcnt1_i32_b64 s47, s[52:53]
    s_add_u32 s46, s46, s47
    s_bcnt1_i32_b64 s47, s[54:55]
    s_add_u32 s47, s47, s46
    s_cbranch_vccnz K2SLOW
    v_mbcnt_lo_u32_b32 v58, s54, 0
    v_mbcnt_hi_u32_b32 v58, s55, v58
    v_mbcnt_lo_u32_b32 v59, s56, 0
    v_add_lshl_u32 v58, v58, s46, 2
    v_add_lshl_u32 v59, v59, s47, 2
    s_mov_b64 exec, s[54:55]
    ds_write_b32 v58, v119 offset:{ORDER}
    s_mov_b64 exec, s[56:57]
    ds_write_b32 v59, v60 offset:{ORDER}
    s_mov_b64 exec, -1
    s_waitcnt lgkmcnt(0)
    s_barrier
    """)
    def idxread(off):
        for i in range(4): o(f"ds_read_b32 v{IDX+2*i}, v{aS} offset:{SRC+off+4*i}")
    def earead(off):
        for s in range(4): o(f"s_mov_b64 exec, s[{64+2*s}:{65+2*s}]\nds_read_b64 {vr(EA+2*s,2)}, v{aE} offset:{off}")
        o("s_mov_b64 exec, -1")
    def gathers(Y):
        for i in range(4): o(f"buffer_load_dwordx4 {vr(L[Y]+4*i,4)}, {vr(IDX+2*i,2)}, s[16:19], 0 idxen offen")
    def Em(Y, m): o(f"v_mfma_f32_32x32x16_bf16 {vr(T[Y],16)}, {vr(EA+4*m,4)}, {vr(WCB+4*m,4)}, {vr(CREP if m==0 else T[Y],16)}")
    def U(X, i): o(f"v_mfma_f32_16x16x32_bf16 {vr(T[X]+4*i,4)}, {vr(SEL,4)}, {vr(L[X]+4*i,4)}, {vr(T[X]+4*i,4)}")
    def ex(X, i):
        for s in range(4): o(f"v_exp_f32 v{T[X]+4*i+s}, v{T[X]+4*i+s} clamp")
    def pk(op, d, *a):
        for q in (0, 2): o(f"v_pk_{op}_f32 {vr(d+q,2)}, " + ", ".join(vr(x+q,2) for x in a))
    def chain(X):
        t, l = T[X], L[X]
        for j in range(8): o(f"v_pk_fma_f32 {vr(t+2*j,2)}, {vr(t+2*j,2)}, {KP}, {KP} op_sel:[0,0,1] op_sel_hi:[1,0,1]")
        M, S, Pp = l, l+4, t
        pk("mul", M, l, t+4); pk("fma", M, l+4, t, M); pk("add", S, t, t+4); pk("mul", Pp, t, t+4)
        for i in (2, 3):
            pk("mul", M, M, t+4*i); pk("fma", S, S, t+4*i, Pp); pk("fma", M, l+4*i, Pp, M); pk("mul", Pp, Pp, t+4*i)
        for s in range(4): o(f"v_rcp_f32 v{Pp+s}, v{Pp+s}")
        for q in (0, 2):
            o(f"v_pk_fma_f32 {vr(ACC+q,2)}, {vr(S+q,2)}, {vr(Pp+q,2)}, {vr(ACC+q,2)}")
            o(f"v_pk_fma_f32 {vr(ACC+4+q,2)}, {vr(M+q,2)}, {vr(Pp+q,2)}, {vr(ACC+4+q,2)}")
    def uxread():
        o(f"ds_read_b128 {vr(CREP,4)}, v{aA} offset:256")
        for s in range(4): o(f"ds_read_u16_d16_hi v{CREP+4+s}, v{vXa} offset:{XS+2*s}")
    def full(X):
        Y = 1-X
        o("s_waitcnt lgkmcnt(0)"); gathers(Y); o("s_waitcnt vmcnt(4)")
        U(X,0); U(X,1); earead(32*(X+1)); U(X,2); ex(X,0); U(X,3); ex(X,1)
        o("s_waitcnt lgkmcnt(0)"); Em(Y,0); ex(X,2); Em(Y,1); idxread(32+16*X); ex(X,3); chain(X)
    def last(X):
        o("s_waitcnt vmcnt(0)")
        U(X,0); U(X,1); uxread(); o("s_nop 0"); U(X,2); ex(X,0); U(X,3); ex(X,1); ex(X,2); ex(X,3); chain(X)
    o(f"""
    K2JOB:
    ds_read_u8 v56, v{vO1}
    ds_read_u8 v57, v{vO2}
    ds_read_u8 v58, v{vO1} offset:1
    ds_read_u16 v59, v{vO1} offset:2
    ds_read_b128 {vr(ACC,4)}, v{IDX+1} offset:{CONST}
    ds_read_b128 {vr(ACC+4,4)}, v{IDX+1} offset:{ZERO}
    s_waitcnt lgkmcnt(2)
    v_mul_u32_u24 v{aS}, 192, v56
    v_mad_u32_u24 v{aE}, v57, s41, v{vEb}
    v_mad_u32_u24 v{aA}, v56, s63, v{vAb}
    """)
    idxread(0)
    o(f"""
    v_readfirstlane_b32 s46, v58
    v_lshl_add_u32 v{vOut}, v56, 15, v{vOb}
    v_xor_b32 v{vXa}, v59, v{vXc}
    """)
    earead(0)
    for i in range(4): o(f"ds_read_b128 {vr(CREP+4*i,4)}, v{aA}")
    o("s_cmp_eq_u32 s46, 0\ns_cbranch_scc1 K2Z\ns_waitcnt lgkmcnt(8)")
    gathers(0); idxread(16); o("s_waitcnt lgkmcnt(4)"); Em(0,0); Em(0,1); o("s_nop 6")
    o("K2LOOP:\ns_cmp_eq_u32 s46, 1\ns_cbranch_scc1 K2L0")
    full(0)
    o("s_cmp_eq_u32 s46, 2\ns_cbranch_scc1 K2L1")
    full(1)
    o(f"v_add_u32 v{aS}, 32, v{aS}\nv_add_u32 v{aE}, 64, v{aE}\ns_sub_u32 s46, s46, 2\ns_branch K2LOOP")
    o("K2Z:"); uxread(); o("s_waitcnt lgkmcnt(0)\ns_branch K2EPI")
    o("K2L0:"); last(0); o("s_branch K2EPI")
    o("K2L1:"); last(1)
    o("K2EPI:")
    for s in range(4): o(f"v_rcp_f32 v{ACC+s}, v{ACC+s}")
    o("s_waitcnt lgkmcnt(0)")
    pk("fma", CREP, ACC+4, ACC, CREP)
    for s in range(4): o(f"v_max_f32 v{CREP+s}, 0, v{CREP+s}")
    pk("add", CREP, CREP, CREP+4)
    o(f"""
    v_cvt_pk_bf16_f32 v{CREP}, v{CREP}, v{CREP+1}
    v_cvt_pk_bf16_f32 v{CREP+1}, v{CREP+2}, v{CREP+3}
    buffer_store_dwordx2 {vr(CREP,2)}, v{vOut}, s[20:23], 0 offen
    s_cmp_ge_u32 s33, 4
    s_cbranch_scc1 K2END
    s_mov_b32 s33, 4
    v_add_u32 v{vO1}, s61, v{vO1}
    v_add_u32 v{vO2}, s61, v{vO2}
    s_branch K2JOB
    """)
    o(f"""
    K2SLOW:
    s_load_dwordx2 s[8:9], s[0:1], 48
    v_lshlrev_b32 v56, 4, v0
    v_add_u32 v56, {SRC}, v56
    ds_write_b128 v56, {vr(EA,4)}
    ds_write_b128 v56, {vr(EA,4)} offset:16384
    ds_write_b128 v56, {vr(EA,4)} offset:32768
    v_lshrrev_b32 v57, 1, v118
    v_add_u32 v57, s36, v57
    s_waitcnt vmcnt(0) lgkmcnt(0)
    s_barrier
    global_load_ushort v60, v57, s[8:9]
    global_load_ushort v61, v57, s[8:9] offset:256
    global_load_ushort v62, v57, s[8:9] offset:512
    global_load_ushort v63, v57, s[8:9] offset:768
    s_waitcnt vmcnt(0)
    """)
    for k in range(4): o(f"v_lshlrev_b32 v{60+k}, 16, v{60+k}\nv_mul_f32 v{60+k}, {NL2E}, v{60+k}")
    o(f"""
    v_add_u32 v64, {AU}, v118
    v_add_u32 v65, {SRC}, v118
    s_movk_i32 s42, 132
    s_lshl_b32 s43, s33, 2
    s_add_u32 s44, s43, 4
    K2S1:
    s_lshl_b32 s45, s43, 9
    s_add_u32 s45, s45, s34
    v_mov_b32 v66, s45
    global_load_dword v66, v66, s[24:25]
    s_waitcnt vmcnt(0)
    v_readfirstlane_b32 s45, v66
    s_lshr_b32 s46, s45, 16
    s_and_b32 s45, s45, 0xffff
    s_mul_i32 s47, s43, {RSTR}
    s_add_u32 s45, s45, s47
    s_add_u32 s46, s46, s45
    K2S2:
    s_cmp_ge_u32 s45, s46
    s_cbranch_scc1 K2S3
    v_mov_b32 v66, s45
    global_load_dwordx3 v[68:70], v66, s[26:27]
    s_waitcnt vmcnt(0)
    v_and_b32 v66, 0xffff, v68
    v_lshl_add_u32 v66, v66, 8, v118
    global_load_dword v66, v66, s[12:13]
    v_lshrrev_b32 v68, 16, v68
    v_mad_u32_u24 v67, v68, s42, v64
    ds_read_b32 v67, v67
    v_lshl_add_u32 v68, v68, 7, v65
    v_lshlrev_b32 v72, 16, v69
    v_and_b32 v73, 0xffff0000, v69
    v_lshlrev_b32 v74, 16, v70
    v_and_b32 v75, 0xffff0000, v70
    s_waitcnt vmcnt(0) lgkmcnt(0)
    v_lshlrev_b32 v71, 16, v66
    v_add_f32 v67, v67, v71
    v_fmac_f32 v67, v72, v60
    v_fmac_f32 v67, v73, v61
    v_fmac_f32 v67, v74, v62
    v_fmac_f32 v67, v75, v63
    v_exp_f32 v67, v67 clamp
    v_mov_b32 v71, s49
    v_fma_f32 v67, v67, s48, v71
    v_rcp_f32 v67, v67
    s_add_u32 s45, s45, 12
    v_mul_f32 v66, v66, v67
    ds_add_f32 v68, v67
    ds_add_f32 v68, v66 offset:256
    s_branch K2S2
    K2S3:
    s_add_u32 s43, s43, 1
    s_cmp_lt_u32 s43, s44
    s_cbranch_scc1 K2S1
    s_waitcnt lgkmcnt(0)
    s_barrier
    v_lshrrev_b32 v57, 1, v118
    v_add_u32 v57, s36, v57
    K2S4:
    s_lshl_b32 s43, s33, 9
    v_add_u32 v66, s43, v65
    ds_read_b32 v67, v66
    ds_read_b32 v68, v66 offset:256
    s_mul_i32 s43, s33, 528
    v_add_u32 v66, s43, v64
    ds_read_b32 v69, v66 offset:256
    s_and_b32 s43, s33, 15
    s_lshl_b32 s43, s43, 4
    s_lshl_b32 s44, s33, 8
    s_or_b32 s43, s43, s44
    v_xor_b32 v66, s43, v57
    ds_read_u16 v70, v66 offset:{XS}
    s_lshl_b32 s43, s33, 15
    s_add_u32 s43, s43, s35
    v_add_u32 v66, s43, v57
    s_waitcnt lgkmcnt(0)
    v_add_f32 v67, {f2u(1e-6*2**31)}, v67
    v_rcp_f32 v67, v67
    v_lshlrev_b32 v70, 16, v70
    v_fmac_f32 v69, v68, v67
    v_max_f32 v69, 0, v69
    v_add_f32 v69, v69, v70
    v_cvt_pk_bf16_f32 v69, v69, v69
    buffer_store_short v69, v66, s[20:23], 0 offen
    s_add_u32 s33, s33, 16
    s_cmp_lt_u32 s33, 80
    s_cbranch_scc1 K2S4
    K2END:
    s_endpgm
    """)
    return o.text()

def kd(n, v, s): return f""".p2align 6
.amdhsa_kernel {n}
  .amdhsa_next_free_vgpr {v}
  .amdhsa_next_free_sgpr {s}
  .amdhsa_accum_offset {(v+3)//4*4}
  .amdhsa_group_segment_fixed_size 0
  .amdhsa_kernarg_size 96
  .amdhsa_user_sgpr_count 2
  .amdhsa_user_sgpr_kernarg_segment_ptr 1
  .amdhsa_system_sgpr_workgroup_id_x 1
.end_amdhsa_kernel
"""
def head(n): return f".globl {n}\n.p2align 8\n.type {n},@function\n{n}:\n"
LDS1 = 83968
def build(P):
    s = f"; @launch kernel=k1_kernel grid=({K1WG},1,1) block=(512,1,1) lds={LDS1}\n"
    s += f"; @launch kernel=k2_kernel grid=(256,1,1) block=(1024,1,1) lds={LDS2}\n"
    s += '.amdgcn_target "amdgcn-amd-amdhsa--gfx950"\n.text\n'
    s += head("k1_kernel") + k1(P) + head("k2_kernel") + k2(P)
    s += '.section .rodata,"a"\n' + kd("k1_kernel", 96, 48) + kd("k2_kernel", 128, 80)
    return s
if __name__ == "__main__":
    P = dict(a.split("=") for a in sys.argv[2:])
    s = build(P); open(sys.argv[1], "w").write(s)
    print("hazards:", hz.check(s), "LDS2", LDS2)
```

```python
import sys, struct
sys.path.insert(0, "exp")
import hz
def f2u(x): return struct.unpack("<I", struct.pack("<f", x))[0]
NL2E = f2u(-1.4426950408889634)
import os
WS0 = int(os.environ.get("WS0", "0"), 0)
WS_TABH = 0x280000; WS_REC = WS0+0x500000; RSTR = 30080; WS_OFFS = WS0+0x700000; WS_IMG = WS0+0x708000
NBIN = 64; NBLK = 90; K1WG = NBIN + 2*NBLK + 1
class A:
    def __init__(s, P, k): s.l = []; s.P = P; s.k = k
    def __call__(s, t):
        for x in t.strip("\n").split("\n"):
            x = x.strip()
            if x.startswith("@st"): st(s, s.P, int(x.split()[1])); continue
            if x == "@end": endp(s, s.P, s.k); continue
            if x == "@begin": prof_begin(s, s.P); continue
            if x: s.l.append(x if x.endswith(":") else "  " + x)
    def text(s): return "\n".join(s.l) + "\n"
def vr(a, n): return f"v[{a}:{a+n-1}]" if n > 1 else f"v{a}"

WS_PROF = 0x800000
def prof_begin(o, P):
    if not P.get("prof"): return
    o("s_memrealtime s[98:99]\ns_memtime s[72:73]")
    for i in range(1, 12): o(f"s_mov_b64 s[{72+2*i}:{73+2*i}], 0")
    o("v_lshrrev_b32 v1, 6, v0\ns_nop 0\nv_readfirstlane_b32 s96, v1")
def st(o, P, i):
    if P.get("prof"): o(f"s_memtime s[{72+2*i}:{73+2*i}]")
def endp(o, P, k):
    if not P.get("prof"): o("s_endpgm"); return
    o(f"s_branch PROFEND{k}")
def prof_end(o, P, k):
    if not P.get("prof"): return
    o(f"""
    PROFEND{k}:
    s_memtime s[94:95]
    s_memrealtime s[100:101]
    s_load_dwordx2 s[4:5], s[0:1], 88
    s_mov_b64 exec, -1
    s_waitcnt lgkmcnt(0)
    """)
    for i in range(12): o(f"v_writelane_b32 v1, s{72+2*i}, {i}")
    o(f"""
    v_writelane_b32 v1, s98, 12
    v_writelane_b32 v1, s100, 13
    s_getreg_b32 s6, hwreg(HW_REG_XCC_ID)
    s_getreg_b32 s7, hwreg(HW_REG_HW_ID)
    v_writelane_b32 v1, s6, 14
    v_writelane_b32 v1, s7, 15
    s_lshl_b32 s6, s2, 4
    s_add_u32 s6, s6, s96
    s_lshl_b32 s6, s6, 6
    s_add_u32 s6, s6, {WS_PROF + k*0x80000}
    v_mbcnt_lo_u32_b32 v2, -1, 0
    v_lshl_add_u32 v2, v2, 2, s6
    s_mov_b64 exec, 0xffff
    global_store_dword v2, v1, s[4:5]
    s_endpgm
    """)

def k1(P):
    o = A(P, 0)
    o(f"""
    s_cmp_ge_u32 s2, {K1WG}
    s_cbranch_scc1 K1END
    @begin
    s_load_dwordx2 s[4:5], s[0:1], 88
    s_cmp_lt_u32 s2, {NBIN}
    s_cbranch_scc1 K1BIN
    s_cmp_eq_u32 s2, {K1WG-1}
    s_cbranch_scc1 K1MISC
    """)
    WB, WV, XS = 0, 16384, 32768
    o(f"""
    s_load_dwordx2 s[8:9], s[0:1], 0
    s_load_dwordx2 s[12:13], s[0:1], 40
    s_load_dwordx2 s[14:15], s[0:1], 64
    v_lshrrev_b32 v1, 6, v0
    s_sub_u32 s3, s2, {NBIN}
    v_readfirstlane_b32 s20, v1
    s_and_b32 s21, s3, 1
    s_lshr_b32 s22, s3, 1
    s_mul_i32 s22, s22, {112*256}
    s_lshl_b32 s23, s21, 7
    v_lshlrev_b32 v2, 1, v0
    v_and_b32 v2, 0x20, v2
    v_and_or_b32 v2, v0, 64, v2
    v_lshlrev_b32 v3, 4, v0
    v_and_b32 v3, 0x70, v3
    v_xor_b32 v2, v2, v3
    v_lshrrev_b32 v3, 3, v0
    v_lshl_or_b32 v2, v3, 8, v2
    v_add_u32 v2, s23, v2
    v_add_u32 v3, 0x4000, v2
    v_lshrrev_b32 v4, 4, v0
    v_xor_b32 v5, v4, v0
    v_and_b32 v5, 15, v5
    v_lshlrev_b32 v5, 4, v5
    v_lshl_or_b32 v4, v4, 8, v5
    v_add_u32 v4, s22, v4
    v_add_u32 v5, 0x2000, v4
    v_add_u32 v6, 0x4000, v4
    v_add_u32 v7, 0x6000, v4
    s_lshl_b32 s24, s20, 10
    s_mov_b32 s10, 2560000
    s_mov_b32 s11, 0x00020000
    s_mov_b32 m0, s24
    s_waitcnt lgkmcnt(0)
    @st 1
    global_load_lds_dwordx4 v2, s[12:13]
    s_add_u32 m0, s24, {WV}
    s_mul_i32 s25, s21, {WS_TABH}
    s_add_u32 s25, s25, {WS0}
    global_load_lds_dwordx4 v2, s[14:15]
    s_add_u32 m0, s24, {XS}
    s_add_u32 s16, s4, s25
    buffer_load_dwordx4 v4, s[8:11], 0 offen lds
    s_addc_u32 s17, s5, 0
    s_add_u32 m0, s24, {XS+16384}
    s_mov_b32 s18, 2560000
    buffer_load_dwordx4 v6, s[8:11], 0 offen lds
    s_add_u32 m0, s24, {WB+8192}
    s_mov_b32 s19, 0x00020000
    global_load_lds_dwordx4 v3, s[12:13]
    s_add_u32 m0, s24, {WV+8192}
    s_nop 0
    global_load_lds_dwordx4 v3, s[14:15]
    s_add_u32 m0, s24, {XS+8192}
    s_nop 0
    buffer_load_dwordx4 v5, s[8:11], 0 offen lds
    s_add_u32 m0, s24, {XS+24576}
    s_cmp_ge_u32 s20, 4
    s_cbranch_scc1 K1G1
    buffer_load_dwordx4 v7, s[8:11], 0 offen lds
    K1G1:
    s_and_b32 s26, s20, 3
    s_lshr_b32 s27, s20, 2
    v_and_b32 v1, 63, v0
    v_lshrrev_b32 v2, 4, v1
    v_bfe_u32 v3, v1, 2, 2
    v_lshl_or_b32 v3, v2, 3, v3
    v_bfe_u32 v4, v1, 3, 2
    v_xor_b32 v4, s26, v4
    v_lshlrev_b32 v4, 5, v4
    v_lshl_or_b32 v3, v3, 7, v4
    v_and_b32 v4, 3, v1
    v_lshl_or_b32 v8, v4, 3, v3
    v_and_b32 v4, 15, v1
    v_xor_b32 v5, v4, v2
    v_lshlrev_b32 v5, 4, v5
    v_lshl_or_b32 v5, v4, 8, v5
    s_lshl_b32 s28, s27, 14
    v_add_u32 v10, s28, v5
    v_xor_b32 v11, 64, v10
    v_xor_b32 v12, 0x80, v10
    v_xor_b32 v13, 0xc0, v10
    s_lshl_b32 s29, s26, 6
    s_add_u32 s28, s28, s22
    s_add_u32 s28, s28, s29
    v_lshlrev_b32 v2, 10, v2
    v_lshl_or_b32 v2, v4, 2, v2
    v_add_u32 v9, s28, v2
    s_mov_b32 s30, {NL2E}
    s_mov_b32 s31, {NL2E}
    s_mov_b32 s32, 0x07060100
    s_mov_b32 s33, 0x07060302
    @st 2
    s_waitcnt vmcnt(0)
    @st 3
    s_barrier
    @st 4
    """)
    FB, FV, XF, D = 16, 32, [48, 64], [80, 88]
    def xread(t):
        for kk in range(4): o(f"ds_read_b128 {vr(XF[t&1]+4*kk,4)}, v{10+kk} offset:{XS+4096*t}")
    for kk in range(4):
        for j in range(2): o(f"ds_read_b64_tr_b16 {vr(FB+4*kk+2*j,2)}, v8 offset:{WB+4096*kk+512*j}")
    xread(0)
    o("s_waitcnt lgkmcnt(8)")
    for kk in range(4):
        for j in range(2): o(f"ds_read_b64_tr_b16 {vr(FV+4*kk+2*j,2)}, v8 offset:{WV+4096*kk+512*j}")
    o("s_waitcnt lgkmcnt(8)")
    xread(1)
    o("s_waitcnt lgkmcnt(4)")
    def mm(t):
        d = D[t&1]
        for kk in range(4):
            for (dd, F) in ((d, FB), (d+4, FV)):
                o(f"v_mfma_f32_16x16x32_bf16 {vr(dd,4)}, {vr(XF[t&1]+4*kk,4)}, {vr(F+4*kk,4)}, {'0' if kk==0 else vr(dd,4)}")
    def epi(t):
        d = D[t&1]
        o(f"""
        v_pk_mul_f32 {vr(d,2)}, {vr(d,2)}, s[30:31]
        v_pk_mul_f32 {vr(d+2,2)}, {vr(d+2,2)}, s[30:31]
        v_cvt_pk_bf16_f32 v{d}, v{d}, v{d+1}
        v_cvt_pk_bf16_f32 v{d+2}, v{d+2}, v{d+3}
        """)
        for i in range(4): o(f"v_perm_b32 v{d+4+i}, v{d+4+i}, v{d+(i&2)}, s{32+(i&1)}")
        for i in range(4): o(f"buffer_store_dword v{d+4+i}, v9, s[16:19], 0 offen offset:{256*i} {P.get('st','').replace('_',' ')}")
        o("v_add_u32 v9, 0x1000, v9")
    o("@st 5"); mm(0); xread(2); o("s_waitcnt lgkmcnt(4)")
    mm(1); xread(3); epi(0); o("@st 6"); o("s_waitcnt lgkmcnt(4)")
    mm(2); epi(1)
    o("s_cmp_eq_u32 s27, 1\ns_cbranch_scc1 K1G2\ns_waitcnt lgkmcnt(0)")
    mm(3); epi(2); epi(3)
    o("@end\nK1G2:"); epi(2); o("@end")
    o(f"""
    K1MISC:
    s_load_dwordx2 s[8:9], s[0:1], 48
    v_lshrrev_b32 v1, 6, v0
    s_nop 0
    v_readfirstlane_b32 s20, v1
    s_cmp_ge_u32 s20, 2
    s_cbranch_scc1 K1END
    v_and_b32 v1, 63, v0
    v_and_b32 v2, 15, v0
    v_lshlrev_b32 v2, 3, v2
    s_lshl_b32 s21, s20, 7
    v_add_u32 v2, s21, v2
    s_waitcnt lgkmcnt(0)
    global_load_dwordx2 v[8:9], v2, s[8:9]
    global_load_dwordx2 v[10:11], v2, s[8:9] offset:256
    global_load_dwordx2 v[12:13], v2, s[8:9] offset:512
    global_load_dwordx2 v[14:15], v2, s[8:9] offset:768
    s_mul_i32 s22, s20, {WS_TABH}
    s_add_u32 s22, s22, {2560000+WS0}
    v_lshlrev_b32 v3, 2, v1
    v_add_u32 v3, s22, v3
    v_mov_b32 v4, 0x7149
    global_store_dword v3, v4, s[4:5]
    s_lshl_b32 s22, s20, 12
    s_add_u32 s22, s22, {WS_IMG}
    v_lshlrev_b32 v3, 4, v1
    v_add_u32 v3, s22, v3
    v_bfe_u32 v4, v1, 4, 1
    v_lshrrev_b32 v5, 5, v1
    v_mov_b32 v6, {NL2E}
    v_cmp_eq_u32 vcc, v4, v5
    v_lshrrev_b32 v4, 4, v1
    v_and_b32 v5, 15, v1
    v_cndmask_b32 v6, 0, v6, vcc
    v_lshlrev_b32 v4, 2, v4
    v_sub_u32 v4, v5, v4
    v_mov_b32 v5, 0x3f80
    """)
    for j in range(4): o(f"v_cmp_eq_u32 vcc, {j}, v4\ns_nop 1\nv_cndmask_b32 v{40+j}, 0, v5, vcc")
    o("global_store_dwordx4 v3, v[40:43], s[4:5]\ns_waitcnt vmcnt(2)")
    for k in range(4):
        for s in range(4):
            src = 8+2*k+(s>>1)
            o(f"v_lshlrev_b32 v{16+4*k+s}, 16, v{src}" if s%2 == 0 else f"v_and_b32 v{16+4*k+s}, 0xffff0000, v{src}")
            o(f"v_mul_f32 v{16+4*k+s}, v6, v{16+4*k+s}")
    for s in range(4):
        for kk in range(2): o(f"v_cvt_pk_bf16_f32 v{32+2*s+kk}, v{16+8*kk+s}, v{16+8*kk+4+s}")
    o("""
    global_store_dwordx4 v3, v[32:35], s[4:5] offset:1024
    global_store_dwordx4 v3, v[36:39], s[4:5] offset:2048
    @end
    """)
    CNT, ST = 32768, 33280
    DS, SR, EE, RK, AD = 8, 14, 20, 30, 36
    o(f"""
    K1BIN:
    s_load_dwordx2 s[6:7], s[0:1], 8
    s_load_dwordx4 s[8:11], s[0:1], 16
    v_lshlrev_b32 v1, 2, v0
    v_mov_b32 v2, 0
    ds_write_b32 v1, v2 offset:{CNT}
    v_add_u32 v2, 0x1000, v1
    v_lshlrev_b32 v3, 3, v0
    v_add_u32 v4, 0x2000, v3
    v_add_u32 v5, 0x4000, v3
    v_cmp_gt_u32 s[20:21], {2500-2048}, v0
    """.replace(f"v_cmp_gt_u32 s[20:21], {2500-2048}, v0", f"v_cmp_gt_u32 vcc, {2500-2048}, v0"))
    o(f"""
    s_mul_i32 s12, s2, 10000
    s_add_u32 s13, s12, s12
    s_add_u32 s12, s12, 4096
    s_add_u32 s13, s13, 4096
    s_mov_b64 s[20:21], vcc
    s_waitcnt lgkmcnt(0)
    @st 1
    s_add_u32 s10, s10, s12
    s_addc_u32 s11, s11, 0
    """)
    for p in range(4): o(f"global_load_dword v{DS+p}, v1, s[10:11] offset:{2048*p-4096}")
    o(f"""
    s_mov_b64 exec, s[20:21]
    global_load_dword v{DS+4}, v2, s[10:11]
    s_mov_b64 exec, -1
    s_add_u32 s8, s8, s12
    s_addc_u32 s9, s9, 0
    s_add_u32 s6, s6, s13
    s_addc_u32 s7, s7, 0
    """)
    for p in range(4): o(f"global_load_dword v{SR+p}, v1, s[8:9] offset:{2048*p-4096}")
    for p in range(4): o(f"global_load_dwordx2 {vr(EE+2*p,2)}, v{3+(p>>1)}, s[6:7] offset:{4096*(p&1)-4096}")
    o(f"""
    s_mov_b64 exec, s[20:21]
    global_load_dword v{SR+4}, v2, s[8:9]
    global_load_dwordx2 {vr(EE+8,2)}, v5, s[6:7] offset:-4096
    s_mov_b64 exec, -1
    v_mov_b32 v6, 12
    v_and_b32 v7, 63, v0
    v_lshlrev_b32 v7, 3, v7
    s_mul_i32 s14, s2, {RSTR}
    s_add_u32 s14, s14, {WS_REC}
    s_add_u32 s16, s4, s14
    s_addc_u32 s17, s5, 0
    s_mov_b32 s18, 30000
    s_mov_b32 s19, 0x00020000
    s_lshl_b32 s14, s2, 9
    s_add_u32 s14, s14, {WS_OFFS}
    s_add_u32 s4, s4, s14
    s_addc_u32 s5, s5, 0
    @st 2
    s_barrier
    @st 3
    """)
    for p in range(5):
        if p == 4: o("s_mov_b64 exec, s[20:21]")
        o(f"""
        s_waitcnt vmcnt({14-p})
        v_lshlrev_b32 v{AD+p}, 2, v{DS+p}
        v_and_b32 v{AD+p}, 0x1fc, v{AD+p}
        ds_add_rtn_u32 v{RK+p}, v{AD+p}, v6 offset:{CNT}
        v_lshrrev_b32 v{DS+p}, 7, v{DS+p}
        """)
    o(f"""
    s_mov_b64 exec, -1
    s_waitcnt lgkmcnt(0)
    @st 4
    s_barrier
    @st 5
    ds_read_b64 v[42:43], v7 offset:{CNT}
    s_waitcnt lgkmcnt(0)
    v_add_u32 v44, v42, v43
    v_mov_b32 v45, v44
    s_nop 0
    v_add_u32_dpp v45, v44, v45 row_shr:1 row_mask:0xf bank_mask:0xf bound_ctrl:0
    s_nop 1
    v_add_u32_dpp v45, v44, v45 row_shr:2 row_mask:0xf bank_mask:0xf bound_ctrl:0
    s_nop 1
    v_add_u32_dpp v45, v44, v45 row_shr:3 row_mask:0xf bank_mask:0xf bound_ctrl:0
    s_nop 1
    v_add_u32_dpp v45, v45, v45 row_shr:4 row_mask:0xf bank_mask:0xf bound_ctrl:0
    s_nop 1
    v_add_u32_dpp v45, v45, v45 row_shr:8 row_mask:0xf bank_mask:0xf bound_ctrl:0
    s_nop 1
    v_add_u32_dpp v45, v45, v45 row_bcast:15 row_mask:0xa bank_mask:0xf
    s_nop 1
    v_add_u32_dpp v45, v45, v45 row_bcast:31 row_mask:0xc bank_mask:0xf
    v_sub_u32 v46, v45, v44
    v_sub_u32 v47, v45, v43
    ds_write_b64 v7, v[46:47] offset:{ST}
    """.replace("v_mov_b32 v45, v44\n    s_nop 0", "v_mov_b32 v45, v44\n    s_nop 1"))
    for p in range(5):
        if p == 4: o("s_mov_b64 exec, s[20:21]")
        o(f"ds_read_b32 v{AD+p}, v{AD+p} offset:{ST}")
    o(f"""
    v_cmp_gt_u32 vcc, 64, v0
    s_mov_b64 exec, -1
    v_lshl_or_b32 v46, v42, 16, v46
    v_lshl_or_b32 v47, v43, 16, v47
    @st 6
    s_waitcnt vmcnt(0)
    @st 7
    s_cbranch_vccz K1B1
    global_store_dwordx2 v7, v[46:47], s[4:5]
    K1B1:
    """)
    for p in range(5):
        if p == 4: o("s_mov_b64 exec, s[20:21]")
        o(f"""
        v_lshl_or_b32 v{DS+p}, v{DS+p}, 18, v{SR+p}
        s_waitcnt lgkmcnt({min(15, 4-p+2*p)})
        v_add_u32 v{AD+p}, v{AD+p}, v{RK+p}
        ds_write_b32 v{AD+p}, v{DS+p}
        ds_write2_b32 v{AD+p}, v{EE+2*p}, v{EE+2*p+1} offset0:1 offset1:2
        """)
    o(f"""
    s_mov_b64 exec, -1
    v_lshlrev_b32 v1, 4, v0
    v_add_u32 v2, 0x2000, v1
    v_add_u32 v3, 0x4000, v1
    v_add_u32 v4, 0x6000, v1
    s_waitcnt lgkmcnt(0)
    @st 8
    s_barrier
    @st 9
    """)
    for m in range(4): o(f"ds_read_b128 {vr(8+4*m,4)}, v1 offset:{8192*m}")
    for m in range(4): o(f"s_waitcnt lgkmcnt({3-m})\nbuffer_store_dwordx4 {vr(8+4*m,4)}, v{1+m}, s[16:19], 0 offen {P.get('sr','').replace('_',' ')}")
    o("@end\nK1END:\ns_endpgm"); prof_end(o, P, 0)
    return o.text()

WA, WU, XS = 0, 16384, 32768
CONST, ZERO, CNT, ORDER, SRC = 53248, 53504, 53760, 54272, 54784
EB = SRC + 16384; AU = EB + 32768; LDS2 = AU + 80*528
aS, aE, aA, vOut = 0, 1, 2, 3
SEL, WCB, EA, IDX, ACC, CREP = 4, 8, 16, 24, 32, 40
L = [56, 72]; T = [88, 104]
vXa, vO1, vO2, vEb, vAb, vOb, vXc, JUNK = 120, 121, 122, 123, 124, 125, 126, 127
KP = "s[48:49]"
def k2(P):
    o = A(P, 1)
    o(f"""
    s_cmp_ge_u32 s2, 256
    s_cbranch_scc1 K2END
    @begin
    s_load_dwordx2 s[24:25], s[0:1], 88
    s_load_dwordx2 s[4:5], s[0:1], 0
    s_load_dwordx2 s[8:9], s[0:1], 32
    s_load_dwordx2 s[10:11], s[0:1], 56
    s_load_dwordx2 s[20:21], s[0:1], 72
    v_lshrrev_b32 v56, 6, v0
    s_and_b32 s30, s2, 1
    v_readfirstlane_b32 s33, v56
    s_bfe_u32 s31, s2, 0x20001
    s_lshl_b32 s31, s31, 5
    s_lshr_b32 s32, s2, 3
    s_add_u32 s31, s31, s32
    ; s30=h s31=b s32=wgq s33=w
    s_lshl_b32 s34, s31, 2
    s_add_u32 s34, s34, {WS_OFFS}
    v_lshrrev_b32 v57, 4, v0
    v_lshlrev_b32 v58, 9, v57
    v_add_u32 v58, s34, v58
    ; x voff
    s_lshl_b32 s35, s31, 8
    v_xor_b32 v59, v57, v0
    v_and_b32 v59, 15, v59
    v_lshlrev_b32 v59, 4, v59
    v_lshl_or_b32 v59, v57, 15, v59
    v_add_u32 v59, s35, v59
    v_add_u32 v60, 0x200000, v59
    ; W voff
    s_lshl_b32 s36, s30, 7
    v_lshlrev_b32 v61, 1, v0
    v_and_b32 v61, 0x20, v61
    v_and_or_b32 v61, v0, 64, v61
    v_lshlrev_b32 v62, 4, v0
    v_and_b32 v63, 0x70, v62
    v_xor_b32 v61, v61, v63
    v_lshrrev_b32 v63, 3, v0
    v_lshl_or_b32 v61, v63, 8, v61
    v_add_u32 v61, s36, v61
    s_lshl_b32 s37, s30, 12
    s_add_u32 s37, s37, {WS_IMG}
    v_and_b32 v63, 0x3f0, v62
    v_add_u32 v63, s37, v63
    s_lshl_b32 s38, s33, 10
    s_mov_b32 s6, 2560000
    s_mov_b32 s7, 0x00020000
    s_add_u32 m0, s38, {XS+16384}
    s_cmp_ge_u32 s33, 4
    s_waitcnt lgkmcnt(0)
    @st 1
    global_load_dword v64, v58, s[24:25]
    s_cbranch_scc1 K2A
    buffer_load_dwordx4 v60, s[4:7], 0 offen lds
    s_cmp_eq_u32 s33, 0
    s_cselect_b32 s39, {f2u(1e-6*2**31)}, 0
    v_lshlrev_b32 v65, 2, v0
    v_mov_b32 v66, s39
    ds_write_b32 v65, v66 offset:{CONST}
    K2A:
    s_add_u32 m0, s38, {XS}
    s_mul_i32 s39, s30, {WS_TABH}
    s_add_u32 s39, s39, {WS0}
    buffer_load_dwordx4 v59, s[4:7], 0 offen lds
    s_add_u32 m0, s38, {WA}
    s_add_u32 s16, s24, s39
    global_load_lds_dwordx4 v61, s[8:9]
    s_addc_u32 s17, s25, 0
    s_add_u32 m0, s38, {WU}
    s_mov_b32 s12, s16
    global_load_lds_dwordx4 v61, s[10:11]
    global_load_dwordx4 {vr(SEL,4)}, v63, s[24:25]
    global_load_dwordx4 {vr(WCB,4)}, v63, s[24:25] offset:1024
    global_load_dwordx4 {vr(WCB+4,4)}, v63, s[24:25] offset:2048
    s_mov_b32 s13, s17
    s_or_b32 s17, s17, {256<<16}
    s_mov_b32 s18, 10001
    s_mov_b32 s19, 0x00020000
    s_mov_b32 s22, 2560000
    s_mov_b32 s23, 0x00020000
    v_mov_b32 v68, 10000
    v_mov_b32 v69, 10000
    v_mov_b32 v70, 10000
    v_mov_b32 v71, 10000
    """)
    for j in range(8): o(f"v_mov_b32 v{EA+j}, 0")
    o(f"""
    v_add_u32 v65, {EB}, v62
    ds_write_b128 v62, v[68:71] offset:{SRC}
    ds_write_b128 v65, {vr(EA,4)}
    ds_write_b128 v65, {vr(EA,4)} offset:16384
    v_and_b32 v66, 15, v0
    v_mul_u32_u24 v67, 12, v66
    v_mul_u32_u24 v68, {RSTR}, v57
    v_add_u32 v68, v68, v67
    s_add_u32 s26, s24, {WS_REC}
    s_addc_u32 s27, s25, 0
    v_and_b32 v69, 63, v0
    s_mul_i32 s39, s32, 626
    s_mul_i32 s40, s33, 40
    s_add_u32 s39, s39, s40
    v_add_lshl_u32 v70, v69, s39, 7
    s_movk_i32 s40, 192
    s_movk_i32 s41, 384
    s_waitcnt vmcnt(6)
    @st 2
    v_lshrrev_b32 v71, 16, v64
    v_and_b32 v64, 0xffff, v64
    v_sub_u32 v71, v71, v67
    v_add_u32 v68, v68, v64
    v_cmp_lt_i32 s[50:51], 0, v71
    v_cmp_lt_i32 s[52:53], s40, v71
    v_cmp_lt_i32 s[54:55], s41, v71
    v_cmp_lt_i32 vcc, 576, v71
    s_mov_b64 exec, s[50:51]
    global_load_dwordx3 v[104:106], v68, s[26:27]
    s_mov_b64 exec, s[52:53]
    global_load_dwordx3 v[108:110], v68, s[26:27] offset:192
    s_mov_b64 exec, s[54:55]
    s_mov_b64 s[56:57], vcc
    s_cbranch_execz K2B
    global_load_dwordx3 v[112:114], v68, s[26:27] offset:384
    K2B:
    s_bfm_b64 exec, 40, 0
    global_load_dword v{JUNK}, v70, s[12:13]
    s_mov_b64 exec, -1
    """)
    o(f"""
    s_and_b32 s42, s33, 7
    s_lshr_b32 s43, s33, 3
    s_and_b32 s44, s33, 3
    v_lshrrev_b32 v56, 4, v69
    v_bfe_u32 v57, v69, 2, 2
    v_lshl_or_b32 v57, v56, 3, v57
    v_bfe_u32 v58, v69, 3, 2
    v_xor_b32 v59, s44, v58
    v_lshlrev_b32 v59, 5, v59
    v_lshl_or_b32 v57, v57, 7, v59
    v_and_b32 v59, 3, v69
    v_lshl_or_b32 v57, v59, 3, v57
    s_lshr_b32 s45, s42, 2
    s_lshl_b32 s46, s45, 14
    v_add_u32 v116, s46, v57
    v_xor_b32 v59, v66, v56
    v_lshlrev_b32 v59, 4, v59
    v_lshl_or_b32 v59, v66, 8, v59
    s_mul_i32 s46, s43, {3*4096}
    v_add_u32 v100, s46, v59
    v_xor_b32 v101, 64, v100
    v_xor_b32 v102, 0x80, v100
    v_xor_b32 v103, 0xc0, v100
    s_mul_i32 s46, s43, {48*528}
    s_lshl_b32 s47, s42, 6
    s_add_u32 s46, s46, s47
    s_add_u32 s46, s46, {AU}
    v_mul_u32_u24 v59, 528, v66
    v_lshl_add_u32 v59, v56, 4, v59
    v_add_u32 v117, s46, v59
    s_cmp_eq_u32 s45, 0
    s_cselect_b32 s58, {NL2E}, 1.0
    s_cselect_b32 s59, {f2u(-62.0)}, 0
    s_lshr_b32 s46, s33, 2
    s_sub_u32 s47, 3, s44
    s_cmp_ge_u32 s46, 2
    s_cselect_b32 s60, s47, s44
    s_add_u32 s46, s46, 3
    s_and_b32 s46, s46, 3
    s_lshl_b32 s46, s46, 2
    s_add_u32 s60, s60, s46
    s_lshl_b32 s60, s60, 4
    s_add_u32 s60, s60, {ORDER}
    s_sub_u32 s61, s47, s44
    s_add_u32 s61, s61, 4
    s_lshl_b32 s61, s61, 4
    v_lshl_add_u32 v{vO1}, v56, 2, s60
    v_bfe_u32 v59, v69, 2, 1
    v_lshrrev_b32 v60, 5, v69
    v_lshl_or_b32 v59, v59, 1, v60
    v_lshl_add_u32 v{vO2}, v59, 2, s60
    s_mov_b32 s62, {EB}
    v_lshl_add_u32 v{vEb}, v58, 3, s62
    v_lshlrev_b32 v{IDX+1}, 4, v66
    v_lshlrev_b32 v{IDX+3}, 4, v66
    v_lshlrev_b32 v{IDX+5}, 4, v66
    v_lshlrev_b32 v{IDX+7}, 4, v66
    v_add_u32 v{vAb}, {AU}, v{IDX+1}
    v_lshl_add_u32 v{vXc}, v66, 3, s36
    v_add_u32 v{vOb}, s35, v{vXc}
    v_lshlrev_b32 v118, 2, v69
    v_lshlrev_b32 v59, 4, v66
    v_lshl_or_b32 v59, v69, 8, v59
    v_lshl_or_b32 v119, v59, 16, v69
    s_lshl_b32 s46, s33, 8
    v_or_b32 v119, s46, v119
    s_mov_b32 s48, {f2u(2.0**31)}
    s_mov_b32 s49, {f2u(2.0**-31)}
    s_mov_b32 s64, 0x11111111
    s_mov_b32 s65, s64
    s_lshl_b64 s[66:67], s[64:65], 1
    s_lshl_b64 s[68:69], s[64:65], 2
    s_lshl_b64 s[70:71], s[64:65], 3
    s_movk_i32 s63, 528
    s_waitcnt vmcnt(3) lgkmcnt(0)
    @st 3
    s_barrier
    @st 4
    """)
    FW, XF, D = 40, [56, 72], [88, 92, 96]
    def xread(t):
        for kk in range(4): o(f"ds_read_b128 {vr(XF[t&1]+4*kk,4)}, v{100+kk} offset:{XS+4096*t}")
    def mm(t):
        for kk in range(4):
            o(f"v_mfma_f32_16x16x32_bf16 {vr(D[t],4)}, {vr(FW+4*kk,4)}, {vr(XF[t&1]+4*kk,4)}, {'0' if kk==0 else vr(D[t],4)}")
    def epi(t):
        for q in (0, 2): o(f"v_pk_fma_f32 {vr(D[t]+q,2)}, {vr(D[t]+q,2)}, s[58:59], s[58:59] op_sel:[0,0,1] op_sel_hi:[1,0,1]")
        o(f"ds_write_b128 v117, {vr(D[t],4)} offset:{16*528*t}")
    for kk in range(4):
        for j in range(2): o(f"ds_read_b64_tr_b16 {vr(FW+4*kk+2*j,2)}, v116 offset:{WA+4096*kk+512*j}")
    xread(0); o("s_waitcnt lgkmcnt(4)"); xread(1); o("s_waitcnt lgkmcnt(4)")
    mm(0)
    o("s_cmp_eq_u32 s43, 1\ns_cbranch_scc1 K2G1")
    xread(2); o("s_waitcnt lgkmcnt(4)"); mm(1); o("s_waitcnt lgkmcnt(0)"); mm(2); epi(0); o("s_nop 0"); epi(1); o("s_nop 0"); epi(2)
    o("s_branch K2G2\nK2G1:\ns_waitcnt lgkmcnt(0)"); mm(1); o("s_nop 2"); epi(0); o("s_nop 1"); epi(1)
    o("K2G2:")
    R = [104, 108, 112]
    o(f"""
    v_mov_b32 v56, 4
    @st 5
    s_waitcnt vmcnt(1)
    @st 6
    """)
    for p in range(3):
        o(f"""
        s_mov_b64 exec, s[{50+2*p}:{51+2*p}]
        {"s_cbranch_execz K2C" if p == 2 else ""}
        v_lshrrev_b32 v{60+p}, 16, v{R[p]}
        ds_add_rtn_u32 v{R[p]+3}, v{60+p}, v56 offset:{CNT}
        """)
    o(f"""
    s_mov_b64 exec, s[56:57]
    v_mov_b32 v57, 0x1000
    v_mov_b32 v58, {4*79}
    ds_write_b32 v58, v57 offset:{CNT}
    K2C:
    s_waitcnt lgkmcnt(0)
    """)
    for p in range(3):
        o(f"""
        s_mov_b64 exec, s[{50+2*p}:{51+2*p}]
        {"s_cbranch_execz K2D" if p == 2 else ""}
        v_min_u32 v{R[p]+3}, 188, v{R[p]+3}
        v_mad_u32_u24 v{60+p}, v{60+p}, 48, v{R[p]+3}
        v_lshl_add_u32 v{R[p]+3}, v{60+p}, 1, s62
        ds_write_b16 v{60+p}, v{R[p]} offset:{SRC}
        ds_write2_b32 v{R[p]+3}, v{R[p]+1}, v{R[p]+2} offset0:0 offset1:1
        """)
    o(f"""
    K2D:
    s_mov_b64 exec, -1
    s_lshl_b32 s46, s33, 4
    s_sub_u32 s47, s46, 16
    s_waitcnt lgkmcnt(0)
    s_barrier
    @st 7
    ds_read_b32 v56, v118 offset:{CNT}
    ds_read_b32 v57, v118 offset:{CNT+256}
    v_add_u32 v60, {(64<<24) + 64}, v119
    s_waitcnt lgkmcnt(0)
    v_max_u32 v58, v56, v57
    v_cmp_lt_i32 s[50:51], s46, v56
    v_cmp_lt_i32 s[52:53], s46, v57
    v_cmp_lt_i32 s[54:55], s47, v56
    v_cmp_lt_i32 s[56:57], s47, v57
    v_cmp_lt_u32 vcc, 192, v58
    s_andn2_b64 s[54:55], s[54:55], s[50:51]
    s_andn2_b64 s[56:57], s[56:57], s[52:53]
    s_and_b64 s[56:57], s[56:57], 0xffff
    s_bcnt1_i32_b64 s46, s[50:51]
    s_bcnt1_i32_b64 s47, s[52:53]
    s_add_u32 s46, s46, s47
    s_bcnt1_i32_b64 s47, s[54:55]
    s_add_u32 s47, s47, s46
    s_cbranch_vccnz K2SLOW
    v_mbcnt_lo_u32_b32 v58, s54, 0
    v_mbcnt_hi_u32_b32 v58, s55, v58
    v_mbcnt_lo_u32_b32 v59, s56, 0
    v_add_lshl_u32 v58, v58, s46, 2
    v_add_lshl_u32 v59, v59, s47, 2
    s_mov_b64 exec, s[54:55]
    ds_write_b32 v58, v119 offset:{ORDER}
    s_mov_b64 exec, s[56:57]
    ds_write_b32 v59, v60 offset:{ORDER}
    s_mov_b64 exec, -1
    s_waitcnt lgkmcnt(0)
    s_barrier
    @st 8
    """)
    def idxread(off):
        for i in range(4): o(f"ds_read_b32 v{IDX+2*i}, v{aS} offset:{SRC+off+4*i}")
    def earead(off):
        for s in range(4): o(f"s_mov_b64 exec, s[{64+2*s}:{65+2*s}]\nds_read_b64 {vr(EA+2*s,2)}, v{aE} offset:{off}")
        o("s_mov_b64 exec, -1")
    def gathers(Y):
        for i in range(4): o(f"buffer_load_dwordx4 {vr(L[Y]+4*i,4)}, {vr(IDX+2*i,2)}, s[16:19], 0 idxen offen")
    def Em(Y, m): o(f"v_mfma_f32_32x32x16_bf16 {vr(T[Y],16)}, {vr(EA+4*m,4)}, {vr(WCB+4*m,4)}, {vr(CREP if m==0 else T[Y],16)}")
    def U(X, i): o(f"v_mfma_f32_16x16x32_bf16 {vr(T[X]+4*i,4)}, {vr(SEL,4)}, {vr(L[X]+4*i,4)}, {vr(T[X]+4*i,4)}")
    def ex(X, i):
        for s in range(4): o(f"v_exp_f32 v{T[X]+4*i+s}, v{T[X]+4*i+s} clamp")
    def pk(op, d, *a):
        for q in (0, 2): o(f"v_pk_{op}_f32 {vr(d+q,2)}, " + ", ".join(vr(x+q,2) for x in a))
    def chain(X):
        t, l = T[X], L[X]
        for j in range(8): o(f"v_pk_fma_f32 {vr(t+2*j,2)}, {vr(t+2*j,2)}, {KP}, {KP} op_sel:[0,0,1] op_sel_hi:[1,0,1]")
        M, S, Pp = l, l+4, t
        pk("mul", M, l, t+4); pk("fma", M, l+4, t, M); pk("add", S, t, t+4); pk("mul", Pp, t, t+4)
        for i in (2, 3):
            pk("mul", M, M, t+4*i); pk("fma", S, S, t+4*i, Pp); pk("fma", M, l+4*i, Pp, M); pk("mul", Pp, Pp, t+4*i)
        for s in range(4): o(f"v_rcp_f32 v{Pp+s}, v{Pp+s}")
        for q in (0, 2):
            o(f"v_pk_fma_f32 {vr(ACC+q,2)}, {vr(S+q,2)}, {vr(Pp+q,2)}, {vr(ACC+q,2)}")
            o(f"v_pk_fma_f32 {vr(ACC+4+q,2)}, {vr(M+q,2)}, {vr(Pp+q,2)}, {vr(ACC+4+q,2)}")
    def uxread():
        o(f"ds_read_b128 {vr(CREP,4)}, v{aA} offset:256")
        for s in range(4): o(f"ds_read_u16_d16_hi v{CREP+4+s}, v{vXa} offset:{XS+2*s}")
    def full(X):
        Y = 1-X
        o("s_waitcnt lgkmcnt(0)"); gathers(Y); o("s_waitcnt vmcnt(4)")
        U(X,0); U(X,1); earead(32*(X+1)); U(X,2); ex(X,0); U(X,3); ex(X,1)
        o("s_waitcnt lgkmcnt(0)"); Em(Y,0); ex(X,2); Em(Y,1); idxread(32+16*X); ex(X,3); chain(X)
    def last(X):
        o("s_waitcnt vmcnt(0)")
        U(X,0); U(X,1); uxread(); o("s_nop 0"); U(X,2); ex(X,0); U(X,3); ex(X,1); ex(X,2); ex(X,3); chain(X)
    o(f"""
    K2JOB:
    ds_read_u8 v56, v{vO1}
    ds_read_u8 v57, v{vO2}
    ds_read_u8 v58, v{vO1} offset:1
    ds_read_u16 v59, v{vO1} offset:2
    ds_read_b128 {vr(ACC,4)}, v{IDX+1} offset:{CONST}
    ds_read_b128 {vr(ACC+4,4)}, v{IDX+1} offset:{ZERO}
    s_waitcnt lgkmcnt(2)
    v_mul_u32_u24 v{aS}, 192, v56
    v_mad_u32_u24 v{aE}, v57, s41, v{vEb}
    v_mad_u32_u24 v{aA}, v56, s63, v{vAb}
    """)
    idxread(0)
    o(f"""
    v_readfirstlane_b32 s46, v58
    v_lshl_add_u32 v{vOut}, v56, 15, v{vOb}
    v_xor_b32 v{vXa}, v59, v{vXc}
    """)
    earead(0)
    for i in range(4): o(f"ds_read_b128 {vr(CREP+4*i,4)}, v{aA}")
    o("s_cmp_eq_u32 s46, 0\ns_cbranch_scc1 K2Z\ns_waitcnt lgkmcnt(8)")
    gathers(0); idxread(16); o("s_waitcnt lgkmcnt(4)"); Em(0,0); Em(0,1); o("s_nop 6")
    if P.get("prof"): o("s_cmp_lg_u32 s90, 0\ns_cbranch_scc1 K2LOOP\n@st 9")
    o("K2LOOP:\ns_cmp_eq_u32 s46, 1\ns_cbranch_scc1 K2L0")
    full(0)
    o("s_cmp_eq_u32 s46, 2\ns_cbranch_scc1 K2L1")
    full(1)
    o(f"v_add_u32 v{aS}, 32, v{aS}\nv_add_u32 v{aE}, 64, v{aE}\ns_sub_u32 s46, s46, 2\ns_branch K2LOOP")
    o("K2Z:"); uxread(); o("s_waitcnt lgkmcnt(0)\ns_branch K2EPI")
    o("K2L0:"); last(0); o("s_branch K2EPI")
    o("K2L1:"); last(1)
    o("K2EPI:")
    for s in range(4): o(f"v_rcp_f32 v{ACC+s}, v{ACC+s}")
    o("s_waitcnt lgkmcnt(0)")
    pk("fma", CREP, ACC+4, ACC, CREP)
    for s in range(4): o(f"v_max_f32 v{CREP+s}, 0, v{CREP+s}")
    pk("add", CREP, CREP, CREP+4)
    o(f"""
    v_cvt_pk_bf16_f32 v{CREP}, v{CREP}, v{CREP+1}
    v_cvt_pk_bf16_f32 v{CREP+1}, v{CREP+2}, v{CREP+3}
    buffer_store_dwordx2 {vr(CREP,2)}, v{vOut}, s[20:23], 0 offen
    s_cmp_ge_u32 s33, 4
    s_cbranch_scc1 K2FIN
    @st 10
    s_mov_b32 s33, 4
    v_add_u32 v{vO1}, s61, v{vO1}
    v_add_u32 v{vO2}, s61, v{vO2}
    s_branch K2JOB
    """)
    o(f"""
    K2SLOW:
    s_load_dwordx2 s[8:9], s[0:1], 48
    v_lshlrev_b32 v56, 4, v0
    v_add_u32 v56, {SRC}, v56
    ds_write_b128 v56, {vr(EA,4)}
    ds_write_b128 v56, {vr(EA,4)} offset:16384
    ds_write_b128 v56, {vr(EA,4)} offset:32768
    v_lshrrev_b32 v57, 1, v118
    v_add_u32 v57, s36, v57
    s_waitcnt vmcnt(0) lgkmcnt(0)
    s_barrier
    global_load_ushort v60, v57, s[8:9]
    global_load_ushort v61, v57, s[8:9] offset:256
    global_load_ushort v62, v57, s[8:9] offset:512
    global_load_ushort v63, v57, s[8:9] offset:768
    s_waitcnt vmcnt(0)
    """)
    for k in range(4): o(f"v_lshlrev_b32 v{60+k}, 16, v{60+k}\nv_mul_f32 v{60+k}, {NL2E}, v{60+k}")
    o(f"""
    v_add_u32 v64, {AU}, v118
    v_add_u32 v65, {SRC}, v118
    s_movk_i32 s42, 132
    s_lshl_b32 s43, s33, 2
    s_add_u32 s44, s43, 4
    K2S1:
    s_lshl_b32 s45, s43, 9
    s_add_u32 s45, s45, s34
    v_mov_b32 v66, s45
    global_load_dword v66, v66, s[24:25]
    s_waitcnt vmcnt(0)
    v_readfirstlane_b32 s45, v66
    s_lshr_b32 s46, s45, 16
    s_and_b32 s45, s45, 0xffff
    s_mul_i32 s47, s43, {RSTR}
    s_add_u32 s45, s45, s47
    s_add_u32 s46, s46, s45
    K2S2:
    s_cmp_ge_u32 s45, s46
    s_cbranch_scc1 K2S3
    v_mov_b32 v66, s45
    global_load_dwordx3 v[68:70], v66, s[26:27]
    s_waitcnt vmcnt(0)
    v_and_b32 v66, 0xffff, v68
    v_lshl_add_u32 v66, v66, 8, v118
    global_load_dword v66, v66, s[12:13]
    v_lshrrev_b32 v68, 16, v68
    v_mad_u32_u24 v67, v68, s42, v64
    ds_read_b32 v67, v67
    v_lshl_add_u32 v68, v68, 7, v65
    v_lshlrev_b32 v72, 16, v69
    v_and_b32 v73, 0xffff0000, v69
    v_lshlrev_b32 v74, 16, v70
    v_and_b32 v75, 0xffff0000, v70
    s_waitcnt vmcnt(0) lgkmcnt(0)
    v_lshlrev_b32 v71, 16, v66
    v_add_f32 v67, v67, v71
    v_fmac_f32 v67, v72, v60
    v_fmac_f32 v67, v73, v61
    v_fmac_f32 v67, v74, v62
    v_fmac_f32 v67, v75, v63
    v_exp_f32 v67, v67 clamp
    v_mov_b32 v71, s49
    v_fma_f32 v67, v67, s48, v71
    v_rcp_f32 v67, v67
    s_add_u32 s45, s45, 12
    v_mul_f32 v66, v66, v67
    ds_add_f32 v68, v67
    ds_add_f32 v68, v66 offset:256
    s_branch K2S2
    K2S3:
    s_add_u32 s43, s43, 1
    s_cmp_lt_u32 s43, s44
    s_cbranch_scc1 K2S1
    s_waitcnt lgkmcnt(0)
    s_barrier
    v_lshrrev_b32 v57, 1, v118
    v_add_u32 v57, s36, v57
    K2S4:
    s_lshl_b32 s43, s33, 9
    v_add_u32 v66, s43, v65
    ds_read_b32 v67, v66
    ds_read_b32 v68, v66 offset:256
    s_mul_i32 s43, s33, 528
    v_add_u32 v66, s43, v64
    ds_read_b32 v69, v66 offset:256
    s_and_b32 s43, s33, 15
    s_lshl_b32 s43, s43, 4
    s_lshl_b32 s44, s33, 8
    s_or_b32 s43, s43, s44
    v_xor_b32 v66, s43, v57
    ds_read_u16 v70, v66 offset:{XS}
    s_lshl_b32 s43, s33, 15
    s_add_u32 s43, s43, s35
    v_add_u32 v66, s43, v57
    s_waitcnt lgkmcnt(0)
    v_add_f32 v67, {f2u(1e-6*2**31)}, v67
    v_rcp_f32 v67, v67
    v_lshlrev_b32 v70, 16, v70
    v_fmac_f32 v69, v68, v67
    v_max_f32 v69, 0, v69
    v_add_f32 v69, v69, v70
    v_cvt_pk_bf16_f32 v69, v69, v69
    buffer_store_short v69, v66, s[20:23], 0 offen
    s_add_u32 s33, s33, 16
    s_cmp_lt_u32 s33, 80
    s_cbranch_scc1 K2S4
    K2FIN:
    @end
    K2END:
    s_endpgm
    """); prof_end(o, P, 1)
    return o.text()

def kd(n, v, s): return f""".p2align 6
.amdhsa_kernel {n}
  .amdhsa_next_free_vgpr {v}
  .amdhsa_next_free_sgpr {s}
  .amdhsa_accum_offset {(v+3)//4*4}
  .amdhsa_group_segment_fixed_size 0
  .amdhsa_kernarg_size 96
  .amdhsa_user_sgpr_count 2
  .amdhsa_user_sgpr_kernarg_segment_ptr 1
  .amdhsa_system_sgpr_workgroup_id_x 1
.end_amdhsa_kernel
"""
def head(n): return f".globl {n}\n.p2align 8\n.type {n},@function\n{n}:\n"
LDS1 = 83968
def build(P):
    s = f"; @launch kernel=k1_kernel grid=({K1WG},1,1) block=(512,1,1) lds={LDS1}\n"
    s += f"; @launch kernel=k2_kernel grid=(256,1,1) block=(1024,1,1) lds={LDS2}\n"
    s += '.amdgcn_target "amdgcn-amd-amdhsa--gfx950"\n.text\n'
    s += head("k1_kernel") + k1(P) + head("k2_kernel") + k2(P)
    s += '.section .rodata,"a"\n' + kd("k1_kernel", 96, 102 if P.get("prof") else 48) + kd("k2_kernel", 128, 102 if P.get("prof") else 80)
    return s
if __name__ == "__main__":
    P = dict(a.split("=") for a in sys.argv[2:])
    s = build(P); open(sys.argv[1], "w").write(s)
    print("hazards:", hz.check(s), "LDS2", LDS2)
```

```python
import sys, struct
sys.path.insert(0, "exp")
import hz
def f2u(x): return struct.unpack("<I", struct.pack("<f", x))[0]
NL2E = f2u(-1.4426950408889634)
WS_TABH = 0x280000; WS_REC = 0x500000; RSTR = 24064; REC0 = 1024
WS_OFFS = 0x700000; WS_OFF2 = 0x710000; WS_IMG = 0x720000; WS_WC = 0x730000
NBIN = 80; K1WG = 242
class A:
    def __init__(s, P, k): s.l = []; s.P = P; s.k = k
    def __call__(s, t):
        for x in t.strip("\n").split("\n"):
            x = x.strip()
            if x.startswith(';'): continue
            if x.startswith("@st"): st(s, s.P, int(x.split()[1])); continue
            if x == "@end": endp(s, s.P, s.k); continue
            if x == "@begin": prof_begin(s, s.P); continue
            if x: s.l.append(x if x.endswith(":") else "  " + x)
    def text(s): return "\n".join(s.l) + "\n"
def vr(a, n): return f"v[{a}:{a+n-1}]" if n > 1 else f"v{a}"

WS_PROF = 0x800000
def prof_begin(o, P):
    if not P.get("prof"): return
    o("s_memrealtime s[98:99]\ns_memtime s[72:73]")
    for i in range(1, 12): o(f"s_mov_b64 s[{72+2*i}:{73+2*i}], 0")
    o("v_lshrrev_b32 v1, 6, v0\ns_nop 0\nv_readfirstlane_b32 s96, v1")
def st(o, P, i):
    if P.get("prof"): o(f"s_memtime s[{72+2*i}:{73+2*i}]")
def endp(o, P, k):
    if not P.get("prof"): o("s_endpgm"); return
    o(f"s_branch PROFEND{k}")
def prof_end(o, P, k):
    if not P.get("prof"): return
    o(f"""
    PROFEND{k}:
    s_memtime s[94:95]
    s_memrealtime s[100:101]
    s_load_dwordx2 s[4:5], s[0:1], 88
    s_mov_b64 exec, -1
    s_waitcnt lgkmcnt(0)
    """)
    for i in range(12): o(f"v_writelane_b32 v1, s{72+2*i}, {i}")
    o(f"""
    v_writelane_b32 v1, s98, 12
    v_writelane_b32 v1, s100, 13
    s_getreg_b32 s6, hwreg(HW_REG_XCC_ID)
    s_getreg_b32 s7, hwreg(HW_REG_HW_ID)
    v_writelane_b32 v1, s6, 14
    v_writelane_b32 v1, s7, 15
    s_lshl_b32 s6, s2, 4
    s_add_u32 s6, s6, s96
    s_lshl_b32 s6, s6, 6
    s_add_u32 s6, s6, {WS_PROF + k*0x80000}
    v_mbcnt_lo_u32_b32 v2, -1, 0
    v_lshl_add_u32 v2, v2, 2, s6
    s_mov_b64 exec, 0xffff
    global_store_dword v2, v1, s[4:5]
    s_endpgm
    """)
```

```python
from base import *
LDS1 = 83968
def k1(P):
    o = A(P, 0)
    stf = P.get('st','').replace('_',' '); srf = P.get('sr','').replace('_',' ')
    o(f"""
    s_cmp_ge_u32 s2, {K1WG}
    s_cbranch_scc1 K1END
    @begin
    s_load_dwordx2 s[4:5], s[0:1], 88
    s_cmp_lt_u32 s2, {NBIN}
    s_cbranch_scc1 K1BIN
    s_cmp_ge_u32 s2, 240
    s_cbranch_scc1 K1MISC
    """)
    WB, WV, XS = 0, 16384, 32768
    FB, FV, XF, D = 16, 32, [48, 64], [80, 88]
    def waddr():
        o(f"""
        v_lshrrev_b32 v1, 6, v0
        s_and_b32 s21, s2, 1
        v_readfirstlane_b32 s20, v1
        s_lshl_b32 s23, s21, 7
        v_lshlrev_b32 v2, 1, v0
        v_and_b32 v2, 0x20, v2
        v_and_or_b32 v2, v0, 64, v2
        v_lshlrev_b32 v3, 4, v0
        v_and_b32 v3, 0x70, v3
        v_xor_b32 v2, v2, v3
        v_lshrrev_b32 v3, 3, v0
        v_lshl_or_b32 v2, v3, 8, v2
        v_add_u32 v2, s23, v2
        v_add_u32 v3, 0x4000, v2
        s_lshl_b32 s24, s20, 10
        """)
    def traddr():
        o(f"""
        s_and_b32 s26, s20, 3
        s_lshr_b32 s27, s20, 2
        v_and_b32 v1, 63, v0
        v_lshrrev_b32 v2, 4, v1
        v_bfe_u32 v3, v1, 2, 2
        v_lshl_or_b32 v3, v2, 3, v3
        v_bfe_u32 v5, v1, 3, 2
        v_xor_b32 v5, s26, v5
        v_lshlrev_b32 v5, 5, v5
        v_lshl_or_b32 v3, v3, 7, v5
        v_and_b32 v5, 3, v1
        v_lshl_or_b32 v8, v5, 3, v3
        """)
    o(f"""
    s_load_dwordx2 s[8:9], s[0:1], 0
    s_load_dwordx2 s[12:13], s[0:1], 40
    s_load_dwordx2 s[14:15], s[0:1], 64
    """)
    waddr()
    o(f"""
    s_lshr_b32 s22, s2, 3
    s_sub_u32 s22, s22, 10
    s_lshl_b32 s22, s22, 17
    s_bfe_u32 s25, s2, 0x20001
    s_lshl_b32 s25, s25, 13
    s_add_u32 s36, s22, s25
    s_add_u32 s37, s36, 0x8000
    s_add_u32 s38, s36, 0x10000
    s_add_u32 s39, s36, 0x18000
    v_lshrrev_b32 v4, 4, v0
    v_xor_b32 v5, v4, v0
    v_and_b32 v5, 15, v5
    v_lshlrev_b32 v5, 4, v5
    v_lshl_or_b32 v4, v4, 8, v5
    s_mov_b32 s10, 2560000
    s_mov_b32 s11, 0x00020000
    s_mov_b32 s18, 2560000
    s_mov_b32 s19, 0x00020000
    s_mul_i32 s25, s21, {WS_TABH}
    """)
    order = P.get("k1o", "0abcd123")
    dm = {"a": (WB, "global_load_lds_dwordx4 v2, s[12:13]"), "b": (WV, "global_load_lds_dwordx4 v2, s[14:15]"),
          "c": (WB+8192, "global_load_lds_dwordx4 v3, s[12:13]"), "d": (WV+8192, "global_load_lds_dwordx4 v3, s[14:15]")}
    for i in range(4): dm[str(i)] = (XS+8192*i, f"buffer_load_dwordx4 v4, s[8:11], s{36+i} offen lds")
    for n, ch in enumerate(order):
        o(f"s_add_u32 m0, s24, {dm[ch][0]}")
        o("s_waitcnt lgkmcnt(0)\n@st 1" if n == 0 else "s_nop 0")
        o(dm[ch][1])
    o("s_add_u32 s16, s4, s25\ns_addc_u32 s17, s5, 0")
    traddr()
    o(f"""
    v_and_b32 v4, 15, v1
    v_xor_b32 v5, v4, v2
    v_lshlrev_b32 v5, 4, v5
    v_lshl_or_b32 v5, v4, 8, v5
    s_lshl_b32 s28, s27, 12
    v_add_u32 v10, s28, v5
    v_xor_b32 v11, 64, v10
    v_xor_b32 v12, 0x80, v10
    v_xor_b32 v13, 0xc0, v10
    s_lshl_b32 s29, s26, 6
    s_add_u32 s28, s28, s29
    v_lshlrev_b32 v2, 10, v2
    v_lshl_or_b32 v2, v4, 2, v2
    v_add_u32 v9, s28, v2
    s_mov_b32 s30, {NL2E}
    s_mov_b32 s32, 0x07060100
    s_mov_b32 s33, 0x07060302
    @st 2
    """)
    pos = {ch: n for n, ch in enumerate(order)}
    state = {"done": -1, "st": 0}
    def need(chs):
        n = max(pos[c] for c in chs)
        if n <= state["done"]: return
        state["done"] = n
        o(f"s_waitcnt vmcnt({7-n+state['st']})\ns_barrier")
    def xread(t):
        for kk in range(4): o(f"ds_read_b128 {vr(XF[t&1]+4*kk,4)}, v{10+kk} offset:{XS+8192*t}")
    def trread(F, W):
        for kk in range(4):
            for j in range(2): o(f"ds_read_b64_tr_b16 {vr(F+4*kk+2*j,2)}, v8 offset:{W+4096*kk+512*j}")
    def mm(t):
        d = D[t&1]
        for kk in range(4):
            for (dd, F) in ((d, FB), (d+4, FV)):
                o(f"v_mfma_f32_16x16x32_bf16 {vr(dd,4)}, {vr(XF[t&1]+4*kk,4)}, {vr(F+4*kk,4)}, {'0' if kk==0 else vr(dd,4)}")
    def epi(t):
        d = D[t&1]
        for i in range(4): o(f"v_mul_f32 v{d+i}, s30, v{d+i}")
        o(f"v_cvt_pk_bf16_f32 v{d}, v{d}, v{d+1}\nv_cvt_pk_bf16_f32 v{d+2}, v{d+2}, v{d+3}")
        for i in range(4): o(f"v_perm_b32 v{d+4+i}, v{d+4+i}, v{d+(i&2)}, s{32+(i&1)}")
        for i in range(4): o(f"buffer_store_dword v{d+4+i}, v9, s[16:19], s{36+t} offen offset:{256*i} {stf}")
        state["st"] += 4
    need("abcd0"); o("@st 3")
    trread(FB, WB); xread(0); o("s_waitcnt lgkmcnt(8)"); trread(FV, WV); o("s_waitcnt lgkmcnt(0)\n@st 4")
    mm(0); need("1"); xread(1); o("s_nop 1"); epi(0); o("s_waitcnt lgkmcnt(0)\n@st 5")
    mm(1); need("2"); xread(2); o("s_nop 1"); epi(1); o("s_waitcnt lgkmcnt(0)\n@st 6")
    mm(2); need("3"); xread(3); o("s_nop 1"); epi(2); o("s_waitcnt lgkmcnt(0)\n@st 7")
    mm(3); o("s_nop 6"); epi(3)
    o("@end")
    o(f"""
    K1MISC:
    s_load_dwordx2 s[8:9], s[0:1], 48
    s_load_dwordx2 s[12:13], s[0:1], 32
    s_load_dwordx2 s[14:15], s[0:1], 56
    """)
    waddr()
    for n, ch in enumerate("abcd"):
        o(f"s_add_u32 m0, s24, {dm[ch][0]}")
        o("s_waitcnt lgkmcnt(0)" if n == 0 else "s_nop 0")
        o(dm[ch][1])
    traddr()
    o(f"""
    v_and_b32 v4, 15, v1
    v_lshl_or_b32 v4, v4, 2, v2
    v_lshl_add_u32 v4, v4, 1, s23
    global_load_ushort v40, v4, s[8:9]
    global_load_ushort v41, v4, s[8:9] offset:256
    global_load_ushort v42, v4, s[8:9] offset:512
    global_load_ushort v43, v4, s[8:9] offset:768
    s_lshl_b32 s28, s27, 14
    v_add_u32 v8, s28, v8
    s_lshl_b32 s28, s21, 15
    s_lshl_b32 s29, s20, 12
    s_add_u32 s28, s28, s29
    s_add_u32 s28, s28, {WS_IMG}
    v_lshl_add_u32 v9, v1, 4, s28
    s_lshl_b32 s28, s21, 9
    s_add_u32 s28, s28, {WS_WC}
    v_lshl_add_u32 v10, v1, 3, s28
    s_mul_i32 s28, s21, {WS_TABH}
    s_add_u32 s28, s28, 2560000
    v_lshl_add_u32 v11, v1, 2, s28
    v_mov_b32 v12, 0x7149
    s_waitcnt vmcnt(0)
    s_barrier
    """)
    trread(FB, WB)
    for k in range(4): o(f"v_lshlrev_b32 v{40+k}, 16, v{40+k}\nv_mul_f32 v{40+k}, {NL2E}, v{40+k}")
    o("v_cvt_pk_bf16_f32 v40, v40, v41\nv_cvt_pk_bf16_f32 v41, v42, v43\ns_waitcnt lgkmcnt(0)")
    for kk in range(4): o(f"global_store_dwordx4 v9, {vr(FB+4*kk,4)}, s[4:5] offset:{1024*kk}")
    o("""
    s_cmp_lg_u32 s20, 0
    s_cbranch_scc1 K1M1
    global_store_dwordx2 v10, v[40:41], s[4:5]
    global_store_dword v11, v12, s[4:5]
    K1M1:
    @end
    """)
    CNT, ST = 32768, 33280
    DS, SR, EE, RK, AD = 8, 12, 16, 24, 28
    o(f"""
    K1BIN:
    s_load_dwordx2 s[6:7], s[0:1], 8
    s_load_dwordx4 s[8:11], s[0:1], 16
    v_lshlrev_b32 v1, 2, v0
    v_mov_b32 v2, 0
    ds_write_b32 v1, v2 offset:{CNT}
    s_mul_i32 s12, s2, 8000
    s_lshl_b32 s13, s12, 1
    s_add_u32 s13, s13, 4000
    v_lshl_add_u32 v2, v0, 3, s12
    v_lshl_add_u32 v3, v0, 4, s13
    v_lshrrev_b32 v4, 6, v0
    v_cmp_gt_u32 vcc, 500, v0
    v_readfirstlane_b32 s22, v4
    v_mov_b32 v6, 12
    v_and_b32 v5, 63, v0
    v_lshlrev_b32 v7, 3, v5
    s_mov_b64 s[20:21], vcc
    s_mov_b64 exec, vcc
    s_waitcnt lgkmcnt(0)
    @st 1
    global_load_dwordx2 {vr(DS,2)}, v2, s[10:11]
    global_load_dwordx2 {vr(DS+2,2)}, v2, s[10:11] offset:4000
    global_load_dwordx2 {vr(SR,2)}, v2, s[8:9]
    global_load_dwordx4 {vr(EE,4)}, v3, s[6:7] offset:-4000
    global_load_dwordx2 {vr(SR+2,2)}, v2, s[8:9] offset:4000
    global_load_dwordx4 {vr(EE+4,4)}, v3, s[6:7] offset:4000
    s_mul_i32 s14, s2, {RSTR}
    s_add_u32 s15, s14, {WS_REC+REC0}
    s_add_u32 s16, s4, s15
    s_addc_u32 s17, s5, 0
    s_mov_b32 s18, 24000
    s_mov_b32 s19, 0x00020000
    @st 2
    s_barrier
    @st 3
    """)
    for p in range(4):
        if p % 2 == 0: o(f"s_waitcnt vmcnt({5-p//2})")
        o(f"""
        v_lshlrev_b32 v{AD+p}, 2, v{DS+p}
        v_and_b32 v{AD+p}, 0x1fc, v{AD+p}
        ds_add_rtn_u32 v{RK+p}, v{AD+p}, v6 offset:{CNT}
        """)
    for p in range(4): o(f"v_lshrrev_b32 v{DS+p}, 7, v{DS+p}")
    o(f"""
    s_mov_b64 exec, -1
    s_waitcnt lgkmcnt(0)
    @st 4
    s_barrier
    @st 5
    ds_read_b64 v[42:43], v7 offset:{CNT}
    s_waitcnt lgkmcnt(0)
    v_add_u32 v44, v42, v43
    v_mov_b32 v45, v44
    s_nop 1
    v_add_u32_dpp v45, v44, v45 row_shr:1 row_mask:0xf bank_mask:0xf bound_ctrl:0
    s_nop 1
    v_add_u32_dpp v45, v44, v45 row_shr:2 row_mask:0xf bank_mask:0xf bound_ctrl:0
    s_nop 1
    v_add_u32_dpp v45, v44, v45 row_shr:3 row_mask:0xf bank_mask:0xf bound_ctrl:0
    s_nop 1
    v_add_u32_dpp v45, v45, v45 row_shr:4 row_mask:0xf bank_mask:0xf bound_ctrl:0
    s_nop 1
    v_add_u32_dpp v45, v45, v45 row_shr:8 row_mask:0xf bank_mask:0xf bound_ctrl:0
    s_nop 1
    v_add_u32_dpp v45, v45, v45 row_bcast:15 row_mask:0xa bank_mask:0xf
    s_nop 1
    v_add_u32_dpp v45, v45, v45 row_bcast:31 row_mask:0xc bank_mask:0xf
    v_sub_u32 v46, v45, v44
    v_sub_u32 v47, v45, v43
    ds_write_b64 v7, v[46:47] offset:{ST}
    s_mov_b64 exec, s[20:21]
    """)
    for p in range(4): o(f"ds_read_b32 v{AD+p}, v{AD+p} offset:{ST}")
    o("@st 6")
    for p in range(4):
        if p % 2 == 0: o(f"s_waitcnt vmcnt({2-p})")
        o(f"""
        v_lshl_or_b32 v{DS+p}, v{DS+p}, 18, v{SR+p}
        s_waitcnt lgkmcnt({3+p})
        v_add_u32 v{AD+p}, v{AD+p}, v{RK+p}
        ds_write2_b32 v{AD+p}, v{EE+2*p}, v{EE+2*p+1} offset0:0 offset1:1
        ds_write_b32 v{AD+p}, v{DS+p} offset:8
        """)
    o(f"""
    @st 7
    s_mov_b64 exec, -1
    s_cmp_ge_u32 s22, 2
    s_cbranch_scc1 K1B2
    s_cmp_eq_u32 s22, 0
    s_cbranch_scc1 K1B1
    s_lshl_b32 s12, s2, 9
    s_add_u32 s12, s12, {WS_OFF2}
    v_lshl_or_b32 v46, v42, 16, v46
    v_lshl_or_b32 v47, v43, 16, v47
    v_add_u32 v7, s12, v7
    global_store_dwordx2 v7, v[46:47], s[4:5]
    s_branch K1B2
    K1B1:
    s_and_b32 s12, s2, 7
    s_mul_i32 s12, s12, 5120
    s_lshr_b32 s13, s2, 3
    s_lshl2_add_u32 s12, s13, s12
    s_add_u32 s12, s12, {WS_OFFS}
    s_bitcmp1_b32 s2, 3
    s_cselect_b64 vcc, -1, 0
    s_cselect_b32 s13, 63, 0
    s_cselect_b32 s15, 768, 0
    s_sub_u32 s14, s14, s15
    s_add_u32 s14, s14, {REC0}
    v_mul_u32_u24 v42, 5462, v42
    v_mul_u32_u24 v43, 5462, v43
    v_cndmask_b32 v46, v46, v47, vcc
    v_cndmask_b32 v47, v47, v45, vcc
    v_lshrrev_b32 v42, 16, v42
    v_lshrrev_b32 v43, 16, v43
    v_min_u32 v42, 64, v42
    v_min_u32 v43, 64, v43
    v_xor_b32 v42, s13, v42
    v_xor_b32 v43, s13, v43
    v_add_u32 v46, s14, v46
    v_add_u32 v47, s14, v47
    v_lshl_or_b32 v46, v46, 8, v42
    v_lshl_or_b32 v47, v47, 8, v43
    v_mad_u32_u24 v7, v7, 10, s12
    global_store_dword v7, v46, s[4:5]
    global_store_dword v7, v47, s[4:5] offset:40
    K1B2:
    v_lshlrev_b32 v1, 4, v0
    s_movk_i32 s12, 0x2000
    s_movk_i32 s13, 0x4000
    s_waitcnt lgkmcnt(0)
    @st 8
    s_barrier
    @st 9
    """)
    for m in range(3): o(f"ds_read_b128 {vr(8+4*m,4)}, v1 offset:{8192*m}")
    for m in range(3): o(f"s_waitcnt lgkmcnt({2-m})\nbuffer_store_dwordx4 {vr(8+4*m,4)}, v1, s[16:19], {['0','s12','s13'][m]} offen {srf}")
    o("@end\nK1END:\ns_endpgm"); prof_end(o, P, 0)
    return o.text()
```

```python
from base import *
XS = 0; WCL = 20480; MISC = 21504
CNT = MISC; CONST = MISC+512; C79 = MISC+768; JOBC = MISC+1024; ZERO = MISC+1536; ORDER = MISC+1792
AU = MISC+2304; AST = 5184; UO = 4*AST; SRC = AU+2*UO; EB = SRC+8192; LDS2 = EB+52480
aS, aE, aA, vOut, SEL, WC = 0, 1, 2, 3, 4, 8
vXa, vO1, vO2, vAb, vOb, vXc = 10, 11, 12, 13, 14, 15
EA, IDX, ACC, AP, R, S, M = 16, 24, 32, 40, 44, 48, 52
L = [56, 72]; T = [88, 104]; XV = 120
vE1, vE2, vT0, vT1, vT2, vC4, vWc = 16, 17, 18, 19, 20, 21, 22
KP = "s[28:29]"
def k2(P):
    o = A(P, 1)
    npf = int(P.get("npf", 1)); prio = int(P.get("prio", 1))
    FB0 = 40960
    o(f"""
    s_cmp_ge_u32 s2, 256
    s_cbranch_scc1 K2END
    @begin
    s_load_dwordx2 s[24:25], s[0:1], 88
    s_load_dwordx2 s[4:5], s[0:1], 0
    s_load_dwordx2 s[20:21], s[0:1], 72
    v_lshrrev_b32 v56, 6, v0
    v_mov_b32 v57, 0x27102710
    v_readfirstlane_b32 s33, v56
    v_mov_b32 v58, 0
    s_and_b32 s30, s2, 1
    s_lshl_b32 s38, s33, 8
    s_add_u32 m0, s38, {FB0}
    s_bfe_u32 s31, s2, 0x20001
    """)
    for k in range(2): o(f"ds_write_addtid_b32 v57 offset:{SRC-FB0+4096*k}")
    for k in range(8): o(f"ds_write_addtid_b32 v58 offset:{EB-FB0+4096*k}")
    o(f"""
    s_lshl_b32 s31, s31, 5
    s_lshr_b32 s32, s2, 3
    s_add_u32 s31, s31, s32
    ; s30=h s31=b s32=i s33=w
    s_cmp_lt_u32 s33, 2
    s_cselect_b32 s39, 100, 0
    s_cmp_eq_u32 s33, 2
    s_cselect_b32 s40, {f2u(1e-6*2**31)}, 0
    s_cmp_eq_u32 s33, 3
    s_cselect_b32 s40, 7900, s40
    v_mul_u32_u24 v57, s39, v0
    s_mov_b32 m0, s38
    v_add_u32 v57, s40, v57
    s_lshl_b32 s35, s31, 8
    s_lshl_b32 s36, s30, 7
    ds_write_addtid_b32 v57 offset:{MISC}
    v_and_b32 v124, 63, v0
    s_cmp_ge_u32 s33, 8
    s_cbranch_scc1 K2R1
    s_lshl_b32 s34, s33, 7
    s_add_u32 s34, s34, s31
    s_mul_i32 s34, s34, 40
    s_add_u32 s34, s34, {WS_OFFS}
    v_lshrrev_b32 v59, 4, v0
    v_xor_b32 v60, v59, v0
    v_and_b32 v60, 15, v60
    v_lshlrev_b32 v60, 4, v60
    v_lshl_or_b32 v59, v59, 15, v60
    s_lshl_b32 s38, s33, 10
    s_mov_b32 s6, 2560000
    s_mov_b32 s7, 0x00020000
    s_add_u32 s39, s35, 0x100000
    s_add_u32 s60, s35, 0x200000
    s_mov_b32 m0, s38
    s_waitcnt lgkmcnt(0)
    @st 1
    s_load_dwordx8 s[40:47], s[24:25], s34
    s_load_dwordx2 s[48:49], s[24:25], s34 offset:32
    buffer_load_dwordx4 v59, s[4:7], s35 offen lds
    s_add_u32 m0, s38, 8192
    s_nop 0
    buffer_load_dwordx4 v59, s[4:7], s39 offen lds
    s_add_u32 m0, s38, 16384
    s_cmp_ge_u32 s33, 4
    s_cbranch_scc1 K2COM
    buffer_load_dwordx4 v59, s[4:7], s60 offen lds
    s_branch K2COM
    K2R1:
    s_cmp_ge_u32 s33, 12
    s_cbranch_scc1 K2R2
    s_lshl_b32 s39, s30, 15
    s_lshl_b32 s40, s33, 12
    s_add_u32 s39, s39, s40
    s_add_u32 s39, s39, {WS_IMG - 8*4096}
    v_lshl_add_u32 v59, v124, 4, s39
    v_add_u32 v64, 0x4000, v59
    v_mov_b32 v65, v59
    s_waitcnt lgkmcnt(0)
    @st 1
    """)
    FA, FU, XF, D = 32, 48, [64, 80], [96, 104]
    for kk in range(4): o(f"global_load_dwordx4 {vr(FA+4*kk,4)}, v65, s[24:25] offset:{1024*kk}")
    for kk in range(4): o(f"global_load_dwordx4 {vr(FU+4*kk,4)}, v64, s[24:25] offset:{1024*kk}")
    o(f"""
    s_branch K2COM
    K2R2:
    s_mov_b32 s39, {WS_WC}
    s_mov_b32 m0, {WCL}
    v_lshl_add_u32 v59, v124, 4, s39
    s_cmp_lg_u32 s33, 12
    s_waitcnt lgkmcnt(0)
    @st 1
    s_cbranch_scc1 K2COM
    global_load_lds_dwordx4 v59, s[24:25]
    K2COM:
    s_mul_i32 s39, s30, {WS_TABH}
    s_add_u32 s16, s24, s39
    s_addc_u32 s17, s25, 0
    s_mov_b64 s[12:13], s[16:17]
    s_or_b32 s17, s17, {256<<16}
    s_mov_b32 s18, 10001
    s_mov_b32 s19, 0x00020000
    s_mov_b32 s22, 2560000
    s_mov_b32 s23, 0x00020000
    s_add_u32 s8, s24, {WS_REC}
    s_addc_u32 s9, s25, 0
    s_mov_b32 s10, {REC0 + 80*RSTR}
    s_mov_b32 s11, 0x00020000
    v_and_b32 v125, 15, v0
    v_lshrrev_b32 v126, 4, v124
    s_and_b32 s62, s33, 3
    s_lshr_b32 s63, s33, 2
    s_sub_u32 s64, 3, s62
    s_cmp_ge_u32 s63, 2
    s_cselect_b32 s60, s64, s62
    s_add_u32 s63, s63, 3
    s_and_b32 s63, s63, 3
    s_lshl2_add_u32 s60, s63, s60
    s_lshl_b32 s60, s60, 4
    s_sub_u32 s61, s64, s62
    s_add_u32 s61, s61, 4
    s_lshl_b32 s61, s61, 4
    v_lshlrev_b32 v{IDX+1}, 4, v125
    v_lshlrev_b32 v{IDX+3}, 4, v125
    v_lshlrev_b32 v{IDX+5}, 4, v125
    v_lshlrev_b32 v{IDX+7}, 4, v125
    v_lshl_add_u32 v{vO1}, v126, 2, s60
    s_add_u32 s60, s60, {ORDER}
    v_mov_b32 v{vO2}, {C79}
    s_mov_b32 exec_lo, 0x22221111
    s_mov_b32 exec_hi, 0x88884444
    v_and_or_b32 v{vO2}, v0, 12, s60
    s_mov_b64 exec, -1
    s_mov_b32 s64, 0x00100001
    s_mov_b32 s65, 0x10000100
    s_lshl_b64 s[66:67], s[64:65], 1
    s_lshl_b64 s[68:69], s[64:65], 2
    s_lshl_b64 s[70:71], s[64:65], 3
    v_mov_b32 v127, 0x3f80
    v_cndmask_b32 v{SEL}, 0, v127, s[64:65]
    v_cndmask_b32 v{SEL+1}, 0, v127, s[66:67]
    v_cndmask_b32 v{SEL+2}, 0, v127, s[68:69]
    v_cndmask_b32 v{SEL+3}, 0, v127, s[70:71]
    s_movk_i32 s63, {AST-64}
    v_lshrrev_b32 v127, 2, v125
    v_mad_u32_u24 v{vAb}, v127, s63, v{IDX+1}
    v_lshl_add_u32 v{vXc}, v125, 3, s36
    v_add_u32 v{vOb}, s35, v{vXc}
    s_lshl_b32 s64, s33, 1
    s_sub_u32 s65, 44, s64
    s_sub_u32 s64, 46, s64
    s_cmp_eq_u32 s33, 0
    s_cselect_b32 s64, 96, s64
    s_cmp_eq_u32 s33, 15
    s_cselect_b32 s65, -2, s65
    s_sub_u32 s66, s65, s64
    v_mul_u32_u24 v{vT1}, 100, v124
    v_lshl_or_b32 v{vE1}, v124, 8, v{IDX+1}
    v_lshl_or_b32 v{vE1}, v{vE1}, 16, v{vT1}
    v_add_u32 v{vT0}, s64, v{vT1}
    v_add_u32 v{vT1}, s65, v{vT1}
    v_mul_u32_u24 v{vT2}, 100, v125
    v_lshl_or_b32 v{vE2}, v125, 8, v{IDX+1}
    v_lshl_or_b32 v{vE2}, v{vE2}, 16, v{vT2}
    v_add_u32 v{vE2}, {(64<<24)+6400}, v{vE2}
    s_add_u32 s64, s64, 6400
    v_mad_i32_i24 v{vT2}, v126, s66, v{vT2}
    v_add_u32 v{vT2}, s64, v{vT2}
    v_lshlrev_b32 v{vC4}, 2, v125
    s_lshl_b32 s64, s30, 9
    v_lshl_add_u32 v{vWc}, v124, 3, s64
    s_mov_b32 s28, {f2u(2.0**31)}
    s_mov_b32 s29, {f2u(2.0**-31)}
    s_mov_b32 s26, -16
    s_mov_b32 s27, -65
    s_mov_b32 s37, {EB}
    s_cmp_ge_u32 s33, 8
    s_cbranch_scc1 K2R3
    """)
    RR = [56+4*p for p in range(5)]
    o(f"""
    v_mul_u32_u24 v127, 12, v124
    v_mov_b32 v76, 2
    @st 2
    s_waitcnt lgkmcnt(0)
    @st 3
    """)
    for p in range(5):
        o(f"""
        s_bfm_b64 exec, s{40+2*p}, 0
        s_lshr_b32 s62, s{40+2*p}, 8
        buffer_load_dwordx3 {vr(RR[p],3)}, v127, s[8:11], s62 offen
        s_lshl_b64 exec, -2, s{41+2*p}
        s_lshr_b32 s63, s{41+2*p}, 8
        buffer_load_dwordx3 {vr(RR[p],3)}, v127, s[8:11], s63 offen
        """)
    o(f"""
    s_mov_b64 exec, -1
    s_waitcnt vmcnt(10)
    s_barrier
    @st 4
    ds_read_b64 {vr(WC,2)}, v{vWc} offset:{WCL}
    s_or_b64 s[62:63], s[40:41], s[42:43]
    s_or_b64 s[64:65], s[44:45], s[46:47]
    s_or_b64 s[62:63], s[62:63], s[48:49]
    s_or_b64 s[62:63], s[62:63], s[64:65]
    s_or_b32 s62, s62, s63
    s_and_b32 s62, s62, 64
    """)
    for p in range(5):
        o(f"""
        s_bfm_b64 s[64:65], s{40+2*p}, 0
        s_lshl_b64 s[{50+2*p}:{51+2*p}], -2, s{41+2*p}
        s_and_b64 s[66:67], s[64:65], s[{50+2*p}:{51+2*p}]
        s_addc_u32 s62, s62, 0
        s_or_b64 s[{50+2*p}:{51+2*p}], s[{50+2*p}:{51+2*p}], s[64:65]
        """)
    o(f"""
    s_cmp_eq_u32 s62, 0
    s_cbranch_scc1 K2C
    v_lshlrev_b32 v77, 4, v124
    v_mov_b32 v78, 0x10000
    s_bfm_b64 exec, 20, 0
    ds_max_u32 v77, v78 offset:{JOBC}
    K2C:
    """)
    def atom(p):
        o(f"""
        s_mov_b64 exec, s[{50+2*p}:{51+2*p}]
        s_waitcnt vmcnt({8-2*p})
        v_lshrrev_b32 v{RR[p]+3}, 16, v{RR[p]+2}
        ds_add_rtn_u32 v{RR[p]+3}, v{RR[p]+3}, v76 offset:{CNT}
        """)
    def lwrite(p, w):
        o(f"s_mov_b64 exec, s[{50+2*p}:{51+2*p}]")
        if w is not None: o(f"s_waitcnt lgkmcnt({w})")
        o(f"""
        v_lshl_add_u32 v{80+p}, v{RR[p]+3}, 2, s37
        ds_write_b16 v{RR[p]+3}, v{RR[p]+2} offset:{SRC}
        ds_write_b64 v{80+p}, {vr(RR[p],2)}
        """)
    nb = int(P.get("nb", 3))
    atom(0); o("@st 5")
    for p in range(1, 5):
        atom(p)
        if p-1 < nb: lwrite(p-1, 1 if p == 1 else 3)
    o(f"""
    s_mov_b64 exec, -1
    s_mov_b32 m0, 0
    s_waitcnt lgkmcnt({2 if nb == 4 else 0})
    @st 6
    s_barrier
    @st 7
    ds_read_addtid_b32 v88 offset:{CNT}
    ds_read_b32 v89, v{vC4} offset:{CNT+256}
    """)
    for p in range(nb, 5): lwrite(p, None)
    o(f"""
    s_mov_b64 exec, -1
    s_waitcnt lgkmcnt({2*(5-nb)})
    s_branch K2SORT
    K2R3:
    s_cmp_ge_u32 s33, 12
    s_cbranch_scc1 K2R4
    """)
    o(f"""
    v_and_b32 v116, 3, v0
    v_lshl_or_b32 v116, v116, 2, v127
    v_xor_b32 v117, v116, v126
    v_lshlrev_b32 v117, 4, v117
    v_lshl_or_b32 v112, v116, 8, v117
    v_xor_b32 v113, 64, v112
    v_xor_b32 v114, 0x80, v112
    v_xor_b32 v115, 0xc0, v112
    v_mov_b32 v116, {NL2E}
    s_mul_i32 s62, s62, {AST}
    s_add_u32 m0, s62, {AU}
    @st 2
    s_barrier
    @st 4
    ds_read_b64 {vr(WC,2)}, v{vWc} offset:{WCL}
    """)
    def xread(t):
        for kk in range(4): o(f"ds_read_b128 {vr(XF[t&1]+4*kk,4)}, v{112+kk} offset:{XS+4096*t}")
    def mm(t):
        d = D[t&1]
        for kk in range(4):
            for (dd, F) in ((d, FA), (d+4, FU)):
                o(f"v_mfma_f32_16x16x32_bf16 {vr(dd,4)}, {vr(XF[t&1]+4*kk,4)}, {vr(F+4*kk,4)}, {'0' if kk==0 else vr(dd,4)}")
    def epi(t):
        d = D[t&1]
        for i in range(4): o(f"v_fmaak_f32 v{d+i}, v116, v{d+i}, {f2u(-62.0)}")
        for i in range(4): o(f"ds_write_addtid_b32 v{d+i} offset:{1024*t+256*i}")
        for i in range(4): o(f"ds_write_addtid_b32 v{d+4+i} offset:{UO+1024*t+256*i}")
    xread(0); xread(1); o("s_waitcnt vmcnt(0) lgkmcnt(4)\n@st 5")
    mm(0); xread(2); o("s_waitcnt lgkmcnt(4)")
    mm(1); xread(3); epi(0); o("s_waitcnt lgkmcnt(12)")
    mm(2); xread(4); epi(1); o("s_waitcnt lgkmcnt(15)")
    mm(3); epi(2); o("s_waitcnt lgkmcnt(15)")
    mm(4); epi(3); epi(4)
    o(f"""
    s_branch K2R5
    K2R4:
    s_mul_i32 s62, s32, 625
    s_mul_i32 s63, s33, {64*npf}
    s_add_u32 s62, s62, s63
    s_sub_u32 s62, s62, {12*64*npf}
    v_add_lshl_u32 v59, v124, s62, 7
    @st 2
    s_waitcnt vmcnt(0)
    s_barrier
    @st 4
    ds_read_b64 {vr(WC,2)}, v{vWc} offset:{WCL}
    """)
    for k in range(npf):
        o(f"global_load_dword v{XV}, v59, s[12:13]")
        if k < npf-1: o("v_add_u32 v59, 0x2000, v59")
    o(f"""
    K2R5:
    s_mov_b32 m0, 0
    @st 6
    s_barrier
    @st 7
    ds_read_addtid_b32 v88 offset:{CNT}
    ds_read_b32 v89, v{vC4} offset:{CNT+256}
    s_waitcnt lgkmcnt(0)
    K2SORT:
    v_cmp_gt_i32 s[50:51], v88, v{vT0}
    v_cmp_gt_i32 s[54:55], v89, v{vT2}
    v_cmp_gt_i32 s[52:53], v88, v{vT1}
    v_sub_u32_sdwa v88, v88, v{vE1} dst_sel:DWORD dst_unused:UNUSED_PAD src0_sel:DWORD src1_sel:WORD_0
    v_sub_u32_sdwa v89, v89, v{vE2} dst_sel:DWORD dst_unused:UNUSED_PAD src0_sel:DWORD src1_sel:WORD_0
    s_bcnt1_i32_b64 s46, s[50:51]
    s_lshl_b32 s55, s54, 16
    s_bcnt1_i32_b32 s47, s55
    s_andn2_b32 s54, s54, s55
    s_andn2_b64 s[50:51], s[52:53], s[50:51]
    s_add_u32 s46, s46, s47
    s_bcnt1_i32_b64 s47, s[52:53]
    v_mbcnt_lo_u32_b32 v90, s50, 0
    v_mbcnt_lo_u32_b32 v91, s54, 0
    v_mbcnt_hi_u32_b32 v90, s51, v90
    v_add_lshl_u32 v91, v91, s47, 2
    v_add_lshl_u32 v90, v90, s46, 2
    v_and_b32 v93, -16, v91
    v_and_b32 v92, -16, v90
    s_mov_b64 exec, s[50:51]
    ds_write_b32 v90, v{vE1} offset:{ORDER}
    ds_max_u32 v92, v88 offset:{JOBC}
    s_and_b32 exec_lo, s54, 0xffff0000
    s_mov_b32 exec_hi, 0
    ds_write_b32 v91, v{vE2} offset:{ORDER}
    ds_max_u32 v93, v89 offset:{JOBC}
    s_mov_b64 exec, -1
    s_cmp_eq_u32 s33, 0
    s_cselect_b32 s46, s46, 0
    s_cmp_eq_u32 s46, 0
    s_cbranch_scc1 K2D
    v_lshlrev_b32 v77, 4, v124
    v_mov_b32 v78, 0x10000
    s_bfm_b64 exec, 20, 0
    ds_max_u32 v77, v78 offset:{JOBC}
    s_mov_b64 exec, -1
    K2D:
    """)
    if prio: o("s_cmp_lt_u32 s33, 4\ns_cselect_b32 s44, 0, 2\ns_cselect_b32 s43, 0, 3\ns_setprio 2\ns_cbranch_scc0 K2E\ns_setprio 3\nK2E:")
    o(f"""
    s_waitcnt lgkmcnt(0)
    s_barrier
    @st 8
    """)
    def idxread(k):
        for i in range(4): o(f"ds_read_u16 v{IDX+2*i}, v{aS} offset:{SRC-8*k+2*i}")
    def earead(k):
        for m in range(2): o(f"ds_read_b128 {vr(EA+4*m,4)}, v{aE} offset:{128-32*k+16*m}")
    def gathers(Y, r=4):
        for i in range(r): o(f"buffer_load_dwordx4 {vr(L[Y]+4*i,4)}, {vr(IDX+2*i,2)}, s[16:19], 0 idxen offen")
    def E(Y, i): o(f"v_mfma_f32_16x16x16_bf16 {vr(T[Y]+4*i,4)}, {vr(EA+2*i,2)}, {vr(WC,2)}, {vr(AP,4)}")
    def U(X, i): o(f"v_mfma_f32_16x16x32_bf16 {vr(T[X]+4*i,4)}, {vr(SEL,4)}, {vr(L[X]+4*i,4)}, {vr(T[X]+4*i,4)}")
    def ex(X, j, n=2):
        for s in range(n): o(f"v_exp_f32 v{T[X]+j+s}, v{T[X]+j+s} clamp")
    def rc(j):
        for s in range(2): o(f"v_rcp_f32 v{R+j+s}, v{R+j+s}")
    def pk(op, d, *a):
        for q in (0, 2): o(f"v_pk_{op}_f32 {vr(d+q,2)}, " + ", ".join(vr(x+q,2) for x in a))
    def acc(): pk("fma", ACC, S, R, ACC); pk("fma", ACC+4, M, R, ACC+4)
    def chain(X, r=4):
        t, l = T[X], L[X]
        for j in range(2*r): o(f"v_pk_fma_f32 {vr(t+2*j if r > 1 else R+2*j,2)}, {vr(t+2*j,2)}, {KP}, {KP} op_sel:[0,0,1] op_sel_hi:[1,0,1]")
        if r == 1:
            for q in (0, 2): o(f"v_pk_mov_b32 {vr(S+q,2)}, 1.0, 1.0\nv_pk_mov_b32 {vr(M+q,2)}, {vr(l+q,2)}, {vr(l+q,2)} op_sel:[0,1]")
            return
        pk("mul", M, l, t+4); pk("add", S, t, t+4); pk("fma", M, l+4, t, M); pk("mul", R, t, t+4)
        for i in range(2, r):
            pk("mul", M, M, t+4*i); pk("fma", S, S, t+4*i, R); pk("fma", M, l+4*i, R, M); pk("mul", R, R, t+4*i)
    def uxread():
        o(f"ds_read_b128 {vr(AP,4)}, v{aA} offset:{AU+UO}")
        for s in range(4): o(f"ds_read_u16_d16_hi v{XV+s}, v{vXa} offset:{XS+2*s}")
    def full(X, k):
        Y = 1-X
        o("s_waitcnt lgkmcnt(0)"); gathers(Y); o("s_waitcnt vmcnt(4)")
        U(X,0); rc(0); U(X,1); rc(2); idxread(k); U(X,2); ex(X,0); U(X,3); ex(X,2)
        E(Y,0); ex(X,4); E(Y,1); ex(X,6); E(Y,2); ex(X,8); E(Y,3); ex(X,10); earead(k); ex(X,12,4)
        acc(); chain(X)
    def last(X):
        o("s_waitcnt vmcnt(0)")
        U(X,0); rc(0); U(X,1); rc(2); uxread(); U(X,2); ex(X,0); U(X,3); ex(X,2,14)
        acc(); chain(X)
    def first(r):
        o("s_waitcnt lgkmcnt(3)"); gathers(0, r); idxread(1); o("s_waitcnt lgkmcnt(4)")
        for i in range(r): E(0, i)
        earead(1); o("s_waitcnt lgkmcnt(2)"); gathers(1); idxread(2); o("s_waitcnt lgkmcnt(4)")
        for i in range(4): E(1, i)
        earead(2); o("s_waitcnt vmcnt(4)")
        if P.get("prof"): o(f"s_cmp_lg_u32 s90, 0\ns_cbranch_scc1 K2P{r}\n@st 9\nK2P{r}:")
        for i in range(r): U(0, i)
        o(f"s_nop {8-r}")
        ex(0, 0, 4*r)
        if r == 1: o("s_nop 0")
        chain(0, r)
    o(f"""
    K2JOB:
    ds_read_b32 v124, v{vO1} offset:{JOBC}
    ds_read_u16 v125, v{vO1} offset:{ORDER}
    ds_read_u16 v126, v{vO2}
    ds_read_u8 v127, v{vO1} offset:{ORDER+3}
    ds_read_u16 v{vXa}, v{vO1} offset:{ORDER+2}
    ds_read_b128 {vr(ACC,4)}, v{IDX+1} offset:{CONST}
    ds_read_b128 {vr(ACC+4,4)}, v{IDX+1} offset:{ZERO}
    s_waitcnt lgkmcnt(6)
    v_readfirstlane_b32 s46, v124
    s_max_u32 s46, s46, 2
    s_sub_u32 s46, s46, 2
    s_cmp_gt_u32 s46, 94
    s_cbranch_scc1 K2SLOW
    s_and_b32 s47, s46, -8
    s_lshl2_add_u32 s45, s47, s37
    s_sub_u32 s45, s45, 128
    s_waitcnt lgkmcnt(2)
    v_add_u32 v{aS}, s47, v125
    v_lshl_add_u32 v{aE}, v126, 2, s45
    """)
    idxread(0)
    o(f"v_lshl_add_u32 v{aA}, v127, 6, v{vAb}")
    earead(0)
    o(f"""
    ds_read_b128 {vr(AP,4)}, v{aA} offset:{AU}
    v_lshl_add_u32 v{vOut}, v127, 15, v{vOb}
    v_xor_b32 v{vXa}, v{vXa}, v{vXc}
    s_lshr_b32 s47, s46, 3
    s_bitcmp1_b32 s46, 2
    s_cbranch_scc1 K2F34
    s_bitcmp1_b32 s46, 1
    s_cbranch_scc1 K2F2
    """)
    first(1); o("s_branch K2F\nK2F2:"); first(2); o("s_branch K2F\nK2F34:\ns_bitcmp1_b32 s46, 1\ns_cbranch_scc1 K2F4")
    first(3); o("s_branch K2F\nK2F4:"); first(4)
    o("K2F:\ns_cmp_eq_u32 s47, 0\ns_cbranch_scc1 K2Z")
    o("K2LOOP:\ns_cmp_eq_u32 s47, 1\ns_cbranch_scc1 K2L1")
    if prio: o("s_cmp_eq_u32 s47, s44\ns_cbranch_scc0 K2Q1\ns_setprio 1\nK2Q1:")
    full(1, 3)
    o("s_cmp_eq_u32 s47, 2\ns_cbranch_scc1 K2L0")
    if prio: o("s_cmp_eq_u32 s47, s43\ns_cbranch_scc0 K2Q0\ns_setprio 1\nK2Q0:")
    full(0, 4)
    o(f"v_lshl_add_u64 v[0:1], v[0:1], 0, s[26:27]\ns_sub_u32 s47, s47, 2\ns_branch K2LOOP")
    o("K2Z:\ns_waitcnt vmcnt(0)"); uxread(); o("s_branch K2EPI")
    pl = "s_cmp_eq_u32 s44, 0\ns_cbranch_scc1 K2Q%d\ns_setprio 0\nK2Q%d:"
    o("K2L0:")
    if prio: o(pl % (2, 2))
    last(0); o("s_branch K2EPI")
    o("K2L1:")
    if prio: o(pl % (3, 3))
    last(1)
    o("K2EPI:")
    rc(0); rc(2); acc()
    for s in range(4): o(f"v_rcp_f32 v{ACC+s}, v{ACC+s}")
    o("s_waitcnt lgkmcnt(0)")
    pk("fma", AP, ACC+4, ACC, AP)
    for s in range(4): o(f"v_max_f32 v{AP+s}, 0, v{AP+s}")
    pk("add", AP, AP, XV)
    o(f"""
    v_cvt_pk_bf16_f32 v{XV}, v{AP}, v{AP+1}
    v_cvt_pk_bf16_f32 v{XV+1}, v{AP+2}, v{AP+3}
    buffer_store_dwordx2 {vr(XV,2)}, v{vOut}, s[20:23], 0 offen {P.get('so','').replace('_',' ')}
    s_cmp_ge_u32 s33, 4
    s_cbranch_scc1 K2FIN
    @st 10
    s_mov_b32 s33, 4
    s_mov_b32 s44, 2
    s_mov_b32 s43, 3
    v_add_u32 v{vO1}, s61, v{vO1}
    v_add_u32 v{vO2}, s61, v{vO2}
    """)
    if prio: o("s_setprio 2")
    o("s_branch K2JOB")
    slow(o)
    prof_end(o, P, 1)
    return o.text()

def slow(o):
    o(f"""
    K2SLOW:
    s_load_dwordx2 s[40:41], s[0:1], 48
    v_lshlrev_b32 v56, 4, v0
    v_add_u32 v56, {SRC}, v56
    v_and_b32 v118, 63, v0
    v_lshrrev_b32 v64, 4, v118
    v_mul_u32_u24 v64, {AST-64}, v64
    v_lshlrev_b32 v118, 2, v118
    v_add_u32 v64, v64, v118
    s_waitcnt vmcnt(0) lgkmcnt(0)
    ds_write_b128 v56, {vr(ACC+4,4)}
    ds_write_b128 v56, {vr(ACC+4,4)} offset:16384
    ds_write_b128 v56, {vr(ACC+4,4)} offset:32768
    v_lshrrev_b32 v57, 1, v118
    v_add_u32 v57, s36, v57
    s_waitcnt lgkmcnt(0)
    s_barrier
    global_load_ushort v60, v57, s[40:41]
    global_load_ushort v61, v57, s[40:41] offset:256
    global_load_ushort v62, v57, s[40:41] offset:512
    global_load_ushort v63, v57, s[40:41] offset:768
    s_waitcnt vmcnt(0)
    """)
    for k in range(4): o(f"v_lshlrev_b32 v{60+k}, 16, v{60+k}\nv_mul_f32 v{60+k}, {NL2E}, v{60+k}")
    o(f"""
    v_add_u32 v65, {SRC}, v118
    s_lshl_b32 s34, s31, 2
    s_add_u32 s34, s34, {WS_OFF2}
    s_mul_i32 s43, s33, 5
    s_add_u32 s44, s43, 5
    K2S1:
    s_lshl_b32 s45, s43, 9
    s_add_u32 s45, s45, s34
    v_mov_b32 v66, s45
    global_load_dword v66, v66, s[24:25]
    s_waitcnt vmcnt(0)
    v_readfirstlane_b32 s45, v66
    s_lshr_b32 s46, s45, 16
    s_and_b32 s45, s45, 0xffff
    s_mul_i32 s47, s43, {RSTR}
    s_add_u32 s45, s45, s47
    s_add_u32 s46, s46, s45
    K2S2:
    s_cmp_ge_u32 s45, s46
    s_cbranch_scc1 K2S3
    buffer_load_dwordx3 v[68:70], off, s[8:11], s45 offset:{REC0}
    s_waitcnt vmcnt(0)
    v_and_b32 v66, 0xffff, v70
    v_lshl_add_u32 v66, v66, 8, v118
    global_load_dword v66, v66, s[12:13]
    v_lshrrev_b32 v70, 16, v70
    v_lshl_add_u32 v67, v70, 4, v64
    ds_read_b32 v67, v67 offset:{AU}
    v_lshl_add_u32 v70, v70, 7, v65
    v_lshlrev_b32 v72, 16, v68
    v_and_b32 v73, 0xffff0000, v68
    v_lshlrev_b32 v74, 16, v69
    v_and_b32 v75, 0xffff0000, v69
    s_waitcnt vmcnt(0) lgkmcnt(0)
    v_lshlrev_b32 v71, 16, v66
    v_add_f32 v67, v67, v71
    v_fmac_f32 v67, v72, v60
    v_fmac_f32 v67, v73, v61
    v_fmac_f32 v67, v74, v62
    v_fmac_f32 v67, v75, v63
    v_exp_f32 v67, v67 clamp
    v_mov_b32 v71, s29
    v_fma_f32 v67, v67, s28, v71
    v_rcp_f32 v67, v67
    s_add_u32 s45, s45, 12
    v_mul_f32 v66, v66, v67
    ds_add_f32 v70, v67
    ds_add_f32 v70, v66 offset:256
    s_branch K2S2
    K2S3:
    s_add_u32 s43, s43, 1
    s_cmp_lt_u32 s43, s44
    s_cbranch_scc1 K2S1
    s_waitcnt lgkmcnt(0)
    s_barrier
    K2S4:
    s_lshl_b32 s43, s33, 9
    v_add_u32 v66, s43, v65
    ds_read_b32 v67, v66
    ds_read_b32 v68, v66 offset:256
    s_lshl_b32 s43, s33, 6
    v_add_u32 v66, s43, v64
    ds_read_b32 v69, v66 offset:{AU+UO}
    s_and_b32 s43, s33, 15
    s_lshl_b32 s43, s43, 4
    s_lshl_b32 s44, s33, 8
    s_or_b32 s43, s43, s44
    v_xor_b32 v66, s43, v57
    ds_read_u16 v70, v66 offset:{XS}
    s_lshl_b32 s43, s33, 15
    s_add_u32 s43, s43, s35
    v_add_u32 v66, s43, v57
    s_waitcnt lgkmcnt(0)
    v_add_f32 v67, {f2u(1e-6*2**31)}, v67
    v_rcp_f32 v67, v67
    v_lshlrev_b32 v70, 16, v70
    v_fmac_f32 v69, v68, v67
    v_max_f32 v69, 0, v69
    v_add_f32 v69, v69, v70
    v_cvt_pk_bf16_f32 v69, v69, v69
    buffer_store_short v69, v66, s[20:23], 0 offen
    s_add_u32 s33, s33, 16
    s_cmp_lt_u32 s33, 80
    s_cbranch_scc1 K2S4
    K2FIN:
    @end
    K2END:
    s_endpgm
    """)
```

```python
from base import *
from k1 import k1, LDS1
from k2 import k2, LDS2
def kd(n, v, s): return f""".p2align 6
.amdhsa_kernel {n}
  .amdhsa_next_free_vgpr {v}
  .amdhsa_next_free_sgpr {s}
  .amdhsa_accum_offset {(v+3)//4*4}
  .amdhsa_group_segment_fixed_size 0
  .amdhsa_kernarg_size 96
  .amdhsa_user_sgpr_count 2
  .amdhsa_user_sgpr_kernarg_segment_ptr 1
  .amdhsa_system_sgpr_workgroup_id_x 1
.end_amdhsa_kernel
"""
def head(n): return f".globl {n}\n.p2align 8\n.type {n},@function\n{n}:\n"
def build(P):
    s = f"; @launch kernel=k1_kernel grid=({K1WG},1,1) block=(512,1,1) lds={LDS1}\n"
    s += f"; @launch kernel=k2_kernel grid=(256,1,1) block=(1024,1,1) lds={LDS2}\n"
    s += '.amdgcn_target "amdgcn-amd-amdhsa--gfx950"\n.text\n'
    s += head("k1_kernel") + k1(P) + head("k2_kernel") + k2(P)
    s += '.section .rodata,"a"\n' + kd("k1_kernel", 96, 102 if P.get("prof") else 48) + kd("k2_kernel", 128, 102 if P.get("prof") else 80)
    return s
if __name__ == "__main__":
    P = dict(a.split("=") for a in sys.argv[2:])
    s = build(P); open(sys.argv[1], "w").write(s)
    print("hazards:", hz.check(s), "LDS2", LDS2)
```

```python
import sys, struct
sys.path.insert(0, "exp")
import hz
def f2u(x): return struct.unpack("<I", struct.pack("<f", x))[0]
NL2E = f2u(-1.4426950408889634)
WS_FLG = 0x8000; WS_ROW = 0x10000; WS_REC = 0x80000; RS = 7808; WS_TAB = 0x280000; WS_TABH = 0x280000
NCH = 250
class A:
    def __init__(s, P, k): s.l = []; s.P = P; s.k = k
    def __call__(s, t):
        for x in t.strip("\n").split("\n"):
            x = x.strip()
            if x.startswith(';'): continue
            if x.startswith("@st"): st(s, s.P, x.split()[1]); continue
            if x == "@end": endp(s, s.P, s.k); continue
            if x == "@begin": prof_begin(s, s.P); continue
            if x: s.l.append(x if x.endswith(":") else "  " + x)
    def text(s): return "\n".join(s.l) + "\n"
def vr(a, n): return f"v[{a}:{a+n-1}]" if n > 1 else f"v{a}"

WS_PROF = 0x800000
def prof_begin(o, P):
    if not P.get("prof"): return
    o("s_memrealtime s[98:99]\ns_memtime s[72:73]")
    for i in range(1, 12): o(f"s_mov_b64 s[{72+2*i}:{73+2*i}], 0")
    o("v_lshrrev_b32 v1, 6, v0\ns_nop 0\nv_readfirstlane_b32 s96, v1")
def stmap(P): return {c: i+1 for i, c in enumerate(P.get("sm", "abcdefghij"))}
def st(o, P, c):
    i = stmap(P).get(c)
    if P.get("prof") and i: o(f"s_memtime s[{72+2*i}:{73+2*i}]")
def endp(o, P, k):
    if not P.get("prof"): o("s_endpgm"); return
    o(f"s_branch PROFEND{k}")
def prof_end(o, P, k):
    if not P.get("prof"): return
    o(f"""
    PROFEND{k}:
    s_memtime s[94:95]
    s_memrealtime s[100:101]
    s_load_dwordx2 s[4:5], s[0:1], 88
    s_mov_b64 exec, -1
    s_waitcnt lgkmcnt(0)
    """)
    for i in range(12): o(f"v_writelane_b32 v1, s{72+2*i}, {i}")
    o(f"""
    v_writelane_b32 v1, s98, 12
    v_writelane_b32 v1, s100, 13
    s_getreg_b32 s6, hwreg(HW_REG_XCC_ID)
    s_getreg_b32 s7, hwreg(HW_REG_HW_ID)
    v_writelane_b32 v1, s6, 14
    v_writelane_b32 v1, s7, 15
    s_lshl_b32 s6, s2, 4
    s_add_u32 s6, s6, s96
    s_lshl_b32 s6, s6, 6
    s_add_u32 s6, s6, {WS_PROF + k*0x80000}
    v_mbcnt_lo_u32_b32 v2, -1, 0
    v_lshl_add_u32 v2, v2, 2, s6
    s_mov_b64 exec, 0xffff
    global_store_dword v2, v1, s[4:5]
    s_endpgm
    """)
```

```python
from base import *
XS = 0; WCL = 20480; MISC = 21504
CNT = MISC; CONST = MISC+512; C79 = MISC+768; JOBC = MISC+1024; ZERO = MISC+1536; ORDER = MISC+1792
S1 = JOBC+384; TL = JOBC+400
AU = MISC+2304; AST = 5184; UO = 4*AST; SRC = AU+2*UO; EB = SRC+8192
WBV = 25600; BST = EB+32768; CNTB = BST+7680; WAU = BST+8704; LDS = WAU+32768
aS, aE, aA, vOut, SEL, WC = 0, 1, 2, 3, 4, 8
vXa, vO1, vO2, vAb, vOb, vXc = 10, 11, 12, 13, 14, 15
EA, IDX, ACC, AP, R, S, M = 16, 24, 32, 40, 44, 48, 52
L = [56, 72]; T = [88, 104]; XV = 120
vE1, vE2, vT0, vT1, vT2, vC4, vWc = 16, 17, 18, 19, 20, 21, 22
KP = "s[28:29]"
DPP = "row_mask:0xf bank_mask:0xf"
def waddr(o, d, t, swl, shalf):
    o(f"""
    v_lshlrev_b32 v{t}, 1, v124
    v_lshlrev_b32 v{d}, 4, v124
    v_and_b32 v{t}, 0x20, v{t}
    v_and_b32 v{d}, 0x70, v{d}
    s_mul_i32 s38, {swl}, {2048+64}
    v_xor_b32 v{t}, v{t}, v{d}
    v_lshrrev_b32 v{d}, 3, v124
    s_and_b32 s38, s38, {0x1840}
    s_lshl_b32 s39, {shalf}, 7
    v_lshl_or_b32 v{d}, v{d}, 8, v{t}
    s_or_b32 s38, s38, s39
    v_xor_b32 v{d}, s38, v{d}
    """)
def wdma(o, v, srd, so, fl=""):
    for m in range(4): o(f"buffer_load_dwordx4 v{v}, s[{srd}:{srd+3}], {'0' if m == 0 else f's{so+m-1}'} offen offset:{1024*m} {fl} lds")
def wofs(o, so):
    for m in range(3): o(f"s_movk_i32 s{so+m}, {7168*(m+1)}")
def traddr(o, d, t, sct, base):
    o(f"""
    v_bfe_u32 v{d}, v124, 2, 2
    v_bfe_u32 v{t}, v124, 3, 2
    v_lshl_or_b32 v{d}, v126, 5, v{d}
    v_xor_b32 v{t}, {sct}, v{t}
    v_lshl_or_b32 v{d}, v{d}, 2, v{t}
    v_and_b32 v{t}, 3, v124
    v_lshl_or_b32 v{d}, v{d}, 2, v{t}
    v_lshlrev_b32 v{d}, 3, v{d}
    """)
    if base: o(f"v_add_u32 v{d}, {base}, v{d}")
def trread(o, F, a, W):
    for kk in range(4):
        for j in range(2): o(f"ds_read_b64_tr_b16 {vr(F+4*kk+2*j,2)}, v{a} offset:{W+1024*kk+512*j}")
def xaddr(o):
    o(f"""
    s_sub_u32 s39, s33, 6
    v_and_b32 v1, 15, v0
    v_and_b32 v2, 48, v0
    s_lshr_b32 s39, s39, 1
    v_lshl_or_b32 v1, v1, 15, v2
    s_lshl_b32 s39, s39, 19
    v_add_u32 v1, s39, v1
    """)
BX = 96
def bvmm(o, c, dB, dV):
    for kk in range(4):
        for (dd, F) in ((dB, 32+32*c), (dV, 48+32*c)):
            o(f"v_mfma_f32_16x16x32_bf16 {vr(dd,4)}, {vr(F+4*kk,4)}, {vr(BX+4*kk,4)}, {'0' if kk==0 else vr(dd,4)}")
def bvepi(o, c, dB, dV, so):
    for i in range(4): o(f"v_mul_f32 v{dB+i}, s56, v{dB+i}")
    o(f"v_cvt_pk_bf16_f32 v{dB}, v{dB}, v{dB+1}\nv_cvt_pk_bf16_f32 v{dB+2}, v{dB+2}, v{dB+3}")
    for i in range(4): o(f"v_perm_b32 v{dV+i}, v{dV+i}, v{dB+(i&2)}, s{57+(i&1)}")
    o(f"buffer_store_dwordx4 {vr(dV,4)}, v1, s[64:67], {so} offen offset:{64*c} sc1")
def bvconst(o, shalf):
    o(f"""
    s_mul_i32 s64, {shalf}, {WS_TABH}
    s_add_u32 s64, s64, {WS_TAB}
    s_add_u32 s64, s24, s64
    s_addc_u32 s65, s25, 0
    s_mov_b64 s[66:67], s[6:7]
    s_mov_b32 s56, {NL2E}
    s_mov_b32 s57, 0x07060100
    s_mov_b32 s58, 0x07060302
    """)
def setflag(o, val):
    o(f"""
    s_bfm_b64 exec, 20, 0
    v_lshlrev_b32 v116, 4, v124
    v_mov_b32 v117, {val}
    ds_max_u32 v116, v117 offset:{JOBC}
    s_mov_b64 exec, -1
    """)
def gswap(o):
    o(f"""
    v_mov_b32 v56, 0
    ds_read_b128 v[60:63], v56 offset:{TL}
    s_mov_b64 exec, 1
    s_waitcnt lgkmcnt(0)
    global_atomic_cmpswap_x2 v56, v[60:63], s[24:25] sc1
    s_mov_b64 exec, -1
    """)

def kern(P):
    o = A(P, 0)
    g = lambda k, d: int(P.get(k, d))
    npf = g("npf", 0); prio = g("prio", 1); b00 = g("b00", 15); nb = g("nb", 5); tmo = g("tmo", 400)
    en = "nt" if g("ent", 0) else ""; xn = "nt" if g("xnt", 0) else ""; wn = "nt" if g("wnt", 0) else ""
    gs = "sc1" if g("gs", 1) else ""
    o(f"""
    s_cmp_ge_u32 s2, 256
    s_cbranch_scc1 KEND
    @begin
    s_load_dwordx16 s[40:55], s[0:1], 0
    s_load_dwordx8 s[56:63], s[0:1], 64
    s_load_dwordx2 s[4:5], s[0:1], 0
    v_lshrrev_b32 v56, 6, v0
    v_and_b32 v124, 63, v0
    v_readfirstlane_b32 s33, v56
    s_mov_b32 s6, 2560000
    s_mov_b32 s7, 0x00020000
    s_and_b32 s30, s2, 1
    s_bfe_u32 s34, s2, 0x20001
    s_lshr_b32 s32, s2, 3
    s_lshl_b32 s31, s34, 5
    s_lshl4_add_u32 s3, s30, s31
    s_lshr_b32 s38, s2, 4
    s_add_u32 s3, s3, s38
    s_add_u32 s31, s31, s32
    ; s30=h s31=b s32=i s33=w s34=q s3=g
    s_cmp_lt_u32 s33, 2
    s_cselect_b32 s39, 100, 0
    s_cmp_eq_u32 s33, 2
    s_cselect_b32 s38, {f2u(1e-6*2**31)}, 0
    s_cmp_eq_u32 s33, 3
    s_cselect_b32 s38, 7900, s38
    v_mul_u32_u24 v57, s39, v0
    s_lshl_b32 m0, s33, 8
    v_add_u32 v57, s38, v57
    s_cmp_ge_u32 s33, 6
    ds_write_addtid_b32 v57 offset:{MISC}
    s_cbranch_scc1 BV0
    s_cmp_eq_u32 s33, 0
    s_cbranch_scc1 BIN0
    s_cmp_eq_u32 s33, 5
    s_cbranch_scc1 MS0
    ; ---- W loaders ----
    s_setprio 2
    s_and_b32 s35, s33, 3
    s_and_b32 s36, s32, 1
    """)
    waddr(o, 1, 2, "s35", "s36"); wofs(o, 26)
    o(f"""
    s_lshl_b32 s35, s35, 12
    s_add_u32 m0, s35, {WBV}
    s_mov_b32 s66, 32768
    s_mov_b32 s67, s7
    s_mov_b64 s[70:71], s[66:67]
    s_waitcnt lgkmcnt(0)
    @st a
    s_mov_b64 s[64:65], s[50:51]
    s_mov_b64 s[68:69], s[56:57]
    s_barrier
    """)
    wdma(o, 1, 64, 26, wn); o(f"s_add_u32 m0, s35, {WBV+16384}\ns_nop 0"); wdma(o, 1, 68, 26, wn)
    o(f"""
    s_setprio 0
    @st b
    s_branch COM
    MS0:
    v_and_b32 v1, 15, v0
    v_lshrrev_b32 v2, 4, v124
    s_lshl_b32 s36, s30, 7
    v_lshl_or_b32 v1, v1, 2, v2
    s_and_b32 s35, s32, 1
    s_mul_i32 s35, s35, {WS_TABH}
    v_lshl_add_u32 v1, v1, 1, s36
    s_add_u32 s35, s35, {WS_TAB+2560000}
    v_mov_b32 v3, 0x7149
    v_lshl_add_u32 v2, v124, 2, s35
    s_waitcnt lgkmcnt(0)
    @st a
    s_barrier
    """)
    for k in range(4): o(f"global_load_ushort v{40+k}, v1, s[52:53] offset:{256*k}")
    DS, SR, EE, RK, AD = 32, 50, 60, 80, 90
    o(f"""
    s_cmp_lg_u32 s3, 0
    s_cbranch_scc1 COM
    global_store_dword v2, v3, s[62:63] sc1
    s_branch COM
    BIN0:
    s_setprio 3
    s_mul_i32 s38, s2, 2560
    s_mov_b32 s39, {CNTB}
    v_mov_b32 v42, 0
    v_mov_b32 v43, 0
    v_lshl_add_u32 v100, v0, 3, s39
    v_lshl_add_u32 v2, v0, 3, s38
    ds_write_b64 v100, v[42:43]
    v_lshlrev_b32 v3, 1, v2
    v_add_u32 v3, 0x400, v3
    s_cmp_ge_u32 s2, {NCH}
    s_waitcnt lgkmcnt(0)
    @st a
    s_cbranch_scc1 NOBIN
    """)
    lds = [f"global_load_dwordx2 {vr(DS+2*k,2)}, v2, s[46:47] offset:{512*k} {en}" for k in range(5)]
    for k in range(5): lds += [f"global_load_dwordx2 {vr(SR+2*k,2)}, v2, s[44:45] offset:{512*k} {en}", f"global_load_dwordx4 {vr(EE+4*k,4)}, v3, s[42:43] offset:{1024*k-1024} {en}"]
    lds.insert(b00, "s_barrier")
    lds.insert(1, "s_load_dwordx2 s[12:13], s[62:63], 0")
    for x in lds: o(x)
    o(f"""
    s_branch BIN1
    NOBIN:
    v_mov_b32 v1, 0
    s_load_dwordx2 s[12:13], s[62:63], 0
    s_barrier
    s_waitcnt lgkmcnt(0)
    s_branch COM
    BV0:
    """)
    xaddr(o)
    o(f"""
    s_lshl_b32 s38, s3, 8
    s_waitcnt lgkmcnt(0)
    @st a
    s_barrier
    """)
    for kk in range(4): o(f"buffer_load_dwordx4 {vr(BX+4*kk,4)}, v1, s[4:7], s38 offen offset:{64*kk} {xn}")
    FB0 = 40960
    o(f"""
    @st b
    COM:
    s_mov_b64 s[24:25], s[62:63]
    s_mov_b64 s[20:21], s[58:59]
    v_mov_b32 v57, 0x27102710
    v_mov_b32 v58, 0
    s_lshl_b32 s38, s33, 8
    s_add_u32 m0, s38, {FB0}
    s_lshl_b32 s35, s31, 8
    """)
    for k in range(2): o(f"ds_write_addtid_b32 v57 offset:{SRC-FB0+4096*k}")
    for k in range(8): o(f"ds_write_addtid_b32 v58 offset:{EB-FB0+4096*k}")
    o(f"""
    s_lshl_b32 s36, s30, 7
    s_mul_i32 s39, s30, {WS_TABH}
    s_add_u32 s39, s39, {WS_TAB}
    s_add_u32 s16, s24, s39
    s_addc_u32 s17, s25, 0
    s_mov_b64 s[14:15], s[16:17]
    s_or_b32 s17, s17, {256<<16}
    s_mov_b32 s18, 10001
    s_mov_b32 s19, s7
    s_mov_b64 s[22:23], s[6:7]
    v_and_b32 v125, 15, v0
    v_lshrrev_b32 v126, 4, v124
    s_and_b32 s62, s33, 3
    s_lshr_b32 s63, s33, 2
    s_sub_u32 s64, 3, s62
    s_cmp_ge_u32 s63, 2
    s_cselect_b32 s60, s64, s62
    s_add_u32 s63, s63, 3
    s_and_b32 s63, s63, 3
    s_lshl2_add_u32 s60, s63, s60
    s_lshl_b32 s60, s60, 4
    s_sub_u32 s61, s64, s62
    s_add_u32 s61, s61, 4
    s_lshl_b32 s61, s61, 4
    v_lshlrev_b32 v{IDX+1}, 4, v125
    v_lshlrev_b32 v{IDX+3}, 4, v125
    v_lshlrev_b32 v{IDX+5}, 4, v125
    v_lshlrev_b32 v{IDX+7}, 4, v125
    v_lshl_add_u32 v{vO1}, v126, 2, s60
    s_add_u32 s60, s60, {ORDER}
    v_mov_b32 v{vO2}, {C79}
    s_mov_b32 exec_lo, 0x22221111
    s_mov_b32 exec_hi, 0x88884444
    v_and_or_b32 v{vO2}, v0, 12, s60
    s_mov_b64 exec, -1
    s_mov_b32 s64, 0x00100001
    s_mov_b32 s65, 0x10000100
    s_lshl_b64 s[66:67], s[64:65], 1
    s_lshl_b64 s[68:69], s[64:65], 2
    s_lshl_b64 s[70:71], s[64:65], 3
    v_mov_b32 v127, 0x3f80
    v_cndmask_b32 v{SEL}, 0, v127, s[64:65]
    v_cndmask_b32 v{SEL+1}, 0, v127, s[66:67]
    v_cndmask_b32 v{SEL+2}, 0, v127, s[68:69]
    v_cndmask_b32 v{SEL+3}, 0, v127, s[70:71]
    s_movk_i32 s63, {AST-64}
    v_lshrrev_b32 v127, 2, v125
    v_mad_u32_u24 v{vAb}, v127, s63, v{IDX+1}
    v_lshl_add_u32 v{vXc}, v125, 3, s36
    v_add_u32 v{vOb}, s35, v{vXc}
    s_lshl_b32 s64, s33, 1
    s_sub_u32 s65, 44, s64
    s_sub_u32 s64, 46, s64
    s_cmp_eq_u32 s33, 0
    s_cselect_b32 s64, 96, s64
    s_cmp_eq_u32 s33, 15
    s_cselect_b32 s65, -2, s65
    s_sub_u32 s66, s65, s64
    v_mul_u32_u24 v{vT1}, 100, v124
    v_lshl_or_b32 v{vE1}, v124, 8, v{IDX+1}
    v_lshl_or_b32 v{vE1}, v{vE1}, 16, v{vT1}
    v_add_u32 v{vT0}, s64, v{vT1}
    v_add_u32 v{vT1}, s65, v{vT1}
    v_mul_u32_u24 v{vT2}, 100, v125
    v_lshl_or_b32 v{vE2}, v125, 8, v{IDX+1}
    v_lshl_or_b32 v{vE2}, v{vE2}, 16, v{vT2}
    v_add_u32 v{vE2}, {(64<<24)+6400}, v{vE2}
    s_add_u32 s64, s64, 6400
    v_mad_i32_i24 v{vT2}, v126, s66, v{vT2}
    v_add_u32 v{vT2}, s64, v{vT2}
    v_lshlrev_b32 v{vC4}, 2, v125
    v_lshlrev_b32 v{vWc}, 3, v124
    v_mov_b32 v23, 0
    s_mov_b32 s28, {f2u(2.0**31)}
    s_mov_b32 s29, {f2u(2.0**-31)}
    s_mov_b32 s26, -16
    s_mov_b32 s27, -65
    s_mov_b32 s37, {EB}
    s_cmp_lt_u32 s33, 6
    s_cbranch_scc1 LO1
    ; ---- B/V waves ----
    s_lshl_b32 s59, s33, 1
    s_and_b32 s59, s59, 2
    """)
    traddr(o, 2, 3, "s59", 0)
    o(f"""
    v_xor_b32 v3, 32, v2
    s_and_b32 s60, s32, 1
    """)
    bvconst(o, "s60"); waddr(o, 8, 9, "s62", "s30"); wofs(o, 40)
    o(f"""
    s_lshl2_add_u32 s59, s3, s59
    s_lshl_b32 s59, s59, 6
    s_cmp_ge_u32 s33, 12
    s_cselect_b64 s[68:69], s[54:55], s[48:49]
    s_mov_b32 s70, 32768
    s_mov_b32 s71, s7
    s_sub_u32 s38, s33, 6
    s_lshl_b32 s39, s38, 3
    v_or_b32 v9, s39, v126
    v_xor_b32 v10, v9, v124
    v_and_b32 v10, 15, v10
    v_lshlrev_b32 v10, 4, v10
    v_lshl_or_b32 v9, v9, 15, v10
    v_xor_b32 v10, 64, v9
    v_add_u32 v10, {131072-1024}, v10
    s_lshl_b32 m0, s38, 11
    s_lshl_b32 s43, s33, 12
    s_mov_b32 s39, 0x200000
    BVS:
    ds_read_b32 v112, v23 offset:{S1}
    s_sub_u32 s39, s39, 1
    s_cbranch_scc1 BVS1
    s_waitcnt lgkmcnt(0)
    v_cmp_ne_u32 vcc, 4, v112
    s_cbranch_vccnz BVS
    BVS1:
    @st c
    """)
    for c in range(2): trread(o, 32+32*c, 2+c, WBV); trread(o, 48+32*c, 2+c, WBV+16384)
    o("s_waitcnt vmcnt(0) lgkmcnt(15)\n@st d")
    bvmm(o, 0, 112, 116); o("s_waitcnt lgkmcnt(0)"); bvmm(o, 1, 120, 32)
    bvepi(o, 0, 112, 116, "s59"); bvepi(o, 1, 120, 32, "s59")
    o(f"""
    buffer_load_dwordx4 v9, s[4:7], s35 offen lds
    buffer_load_dwordx4 v10, s[4:7], s35 offen offset:1024 lds
    s_cmp_lt_u32 s33, 8
    s_cbranch_scc1 PREC
    s_add_u32 m0, s43, {WAU-8*4096}
    s_cmp_ge_u32 s33, 12
    """)
    wdma(o, 8, 68, 40)
    o("s_cbranch_scc1 PID")
    FA, FU, XF, D = 32, 48, [64, 80], [96, 104]
    traddr(o, 117, 116, "s62", WAU)
    o(f"""
    v_and_b32 v116, 3, v0
    v_lshl_or_b32 v116, v116, 2, v127
    v_xor_b32 v118, v116, v126
    v_lshlrev_b32 v118, 4, v118
    v_lshl_or_b32 v112, v116, 8, v118
    v_xor_b32 v113, 64, v112
    v_xor_b32 v114, 0x80, v112
    v_xor_b32 v115, 0xc0, v112
    v_mov_b32 v116, {NL2E}
    s_lshl2_add_u32 s38, s30, s62
    s_lshl_b32 s38, s38, 12
    s_add_u32 s38, s38, {WS_FLG}
    v_lshl_add_u32 v118, v124, 7, s38
    s_mul_i32 s62, s62, {AST}
    s_add_u32 m0, s62, {AU}
    s_waitcnt vmcnt(0) lgkmcnt(0)
    @st e
    s_barrier
    @st f
    """)
    def xread(t):
        for kk in range(4): o(f"ds_read_b128 {vr(XF[t&1]+4*kk,4)}, v{112+kk} offset:{XS+4096*t}")
    def mm(t):
        d = D[t&1]
        for kk in range(4):
            for (dd, F) in ((d, FA), (d+4, FU)):
                o(f"v_mfma_f32_16x16x32_bf16 {vr(dd,4)}, {vr(XF[t&1]+4*kk,4)}, {vr(F+4*kk,4)}, {'0' if kk==0 else vr(dd,4)}")
    def epi(t):
        d = D[t&1]
        for i in range(4): o(f"v_fmaak_f32 v{d+i}, v116, v{d+i}, {f2u(-62.0)}")
        for i in range(4): o(f"ds_write_addtid_b32 v{d+i} offset:{1024*t+256*i}")
        for i in range(4): o(f"ds_write_addtid_b32 v{d+4+i} offset:{UO+1024*t+256*i}")
    trread(o, FA, 117, 0); xread(0); trread(o, FU, 117, 16384); xread(1)
    o(f"ds_read_b64 {vr(WC,2)}, v{vWc} offset:{WCL}\nds_read_b64 v[120:121], v23 offset:{TL}\ns_waitcnt lgkmcnt(6)")
    mm(0); xread(2); o("s_waitcnt lgkmcnt(4)")
    mm(1); xread(3); epi(0); o("s_waitcnt lgkmcnt(12)")
    mm(2); xread(4); epi(1); o("s_waitcnt lgkmcnt(15)")
    mm(3); epi(2); o("s_waitcnt lgkmcnt(15)")
    mm(4); epi(3); epi(4)
    o(f"""
    @st g
    s_mov_b32 exec_hi, 0
    s_movk_i32 s39, {tmo}
    FP:
    global_load_dwordx2 v[122:123], v118, s[24:25] sc1
    s_sub_u32 s39, s39, 1
    s_cbranch_scc1 FTO
    s_waitcnt vmcnt(0)
    v_cmp_ne_u64 vcc, v[122:123], v[120:121]
    s_and_b64 exec, exec, vcc
    s_cbranch_scc1 FP
    FP1:
    s_mov_b64 exec, -1
    @st h
    s_branch PB1
    PID:
    s_and_b32 s38, s32, 1
    s_lshl_b32 s38, s38, 7
    s_add_u32 s38, s38, s3
    s_lshl_b32 s38, s38, 7
    s_add_u32 s38, s38, {WS_FLG}
    v_mov_b32 v118, s38
    s_cmp_lg_u32 s33, 12
    s_waitcnt vmcnt(0) lgkmcnt(0)
    @st e
    s_barrier
    @st f
    ds_read_b64 v[120:121], v23 offset:{TL}
    ds_read_b64 {vr(WC,2)}, v{vWc} offset:{WCL}
    s_cbranch_scc1 PB1
    s_mov_b64 exec, 1
    s_waitcnt lgkmcnt(0)
    global_store_dwordx2 v118, v[120:121], s[24:25] sc1
    s_mov_b64 exec, -1
    PB1:
    s_mov_b32 m0, 0
    s_barrier
    @st i
    ds_read_addtid_b32 v110 offset:{CNT}
    ds_read_b32 v111, v{vC4} offset:{CNT+256}
    s_waitcnt lgkmcnt(0)
    s_branch SORT
    ; ---- binner ----
    BIN1:
    @st b
    v_mov_b32 v101, 12
    s_mul_i32 s38, s2, {RS}
    s_add_u32 s38, s38, {WS_REC}
    s_add_u32 s64, s62, s38
    s_addc_u32 s65, s63, 0
    s_movk_i32 s66, 7680
    s_mov_b32 s67, s7
    s_movk_i32 s38, 4096
    v_lshlrev_b32 v1, 4, v0
    v_add_u32 v2, {BST}, v1
    """)
    for p in range(10):
        if p % 2 == 0: o(f"s_waitcnt vmcnt({14-p//2})")
        if p == 0: o("@st c")
        o(f"""
        v_and_b32 v{AD+p}, 0x7f, v{DS+p}
        v_lshl_add_u32 v{AD+p}, v{AD+p}, 2, s39
        ds_add_rtn_u32 v{RK+p}, v{AD+p}, v101
        """)
    o("ds_read_b64 v[42:43], v100")
    for p in range(10): o(f"v_lshrrev_b32 v{DS+p}, 7, v{DS+p}")
    o(f"""
    s_waitcnt lgkmcnt(0)
    v_add_u32 v44, v42, v43
    v_subrev_u32 v49, {BST}, v43
    v_subrev_u32 v48, {BST}, v44
    v_add_u32_dpp v45, v44, v44 row_shr:1 {DPP} bound_ctrl:0
    s_nop 1
    v_add_u32_dpp v45, v45, v45 row_shr:2 {DPP} bound_ctrl:0
    s_nop 1
    v_add_u32_dpp v45, v45, v45 row_shr:4 {DPP} bound_ctrl:0
    s_nop 1
    v_add_u32_dpp v45, v45, v45 row_shr:8 {DPP} bound_ctrl:0
    s_nop 1
    v_add_u32_dpp v45, v45, v45 row_bcast:15 row_mask:0xa bank_mask:0xf
    s_nop 1
    v_add_u32_dpp v45, v45, v45 row_bcast:31 row_mask:0xc bank_mask:0xf
    v_sub_u32 v46, v45, v48
    v_sub_u32 v47, v45, v49
    ds_write_b64 v100, v[46:47] offset:512
    """)
    for p in range(10): o(f"ds_read_b32 v{AD+p}, v{AD+p} offset:512")
    for p in range(10):
        if p % 2 == 0: o(f"s_waitcnt vmcnt({8-p})")
        o(f"""
        v_lshl_or_b32 v{DS+p}, v{DS+p}, 18, v{SR+p}
        s_waitcnt lgkmcnt({min(15, 9+p)})
        v_add_u32 v{AD+p}, v{AD+p}, v{RK+p}
        ds_write2_b32 v{AD+p}, v{EE+2*p}, v{EE+2*p+1} offset0:0 offset1:1
        ds_write_b32 v{AD+p}, v{DS+p} offset:8
        """)
    for m in range(8): o(f"ds_read_b128 {vr(60+4*m,4)}, v2 offset:{1024*m}")
    for m in range(8): o(f"s_waitcnt lgkmcnt({7-m})\nbuffer_store_dwordx4 {vr(60+4*m,4)}, v1, s[64:67], {'s38' if m >= 4 else '0'} offen offset:{1024*(m&3)} sc1")
    o(f"""
    @st d
    s_branch COM
    LO1:
    s_cmp_eq_u32 s33, 0
    s_cbranch_scc1 BIN2
    s_cmp_eq_u32 s33, 5
    s_cbranch_scc1 MS1
    v_mov_b32 v1, 1
    s_mov_b64 exec, 1
    s_waitcnt vmcnt(0)
    ds_add_u32 v23, v1 offset:{S1}
    s_mov_b64 exec, -1
    @st c
    s_branch PREC
    MS1:
    s_waitcnt vmcnt(0)
    """)
    for k in range(4): o(f"v_lshlrev_b32 v{40+k}, 16, v{40+k}\nv_mul_f32 v{40+k}, {NL2E}, v{40+k}")
    o(f"""
    v_cvt_pk_bf16_f32 v40, v40, v41
    v_cvt_pk_bf16_f32 v41, v42, v43
    ds_write_b64 v{vWc}, v[40:41] offset:{WCL}
    s_branch PREC
    BIN2:
    s_and_b32 s56, s12, 0xfff80000
    s_add_u32 s56, s56, 0x80000
    s_addc_u32 s57, s13, 0
    v_mov_b32 v32, s56
    v_mov_b32 v33, s57
    v_mov_b32 v34, s12
    v_mov_b32 v35, s13
    s_mov_b64 exec, 1
    ds_write_b128 v23, v[32:35] offset:{TL}
    s_mov_b64 exec, -1
    s_sub_u32 s56, s56, {BST<<6}
    s_bitcmp1_b32 s2, 0
    s_cselect_b64 vcc, -1, 0
    v_add_u32 v45, {BST}, v45
    v_mul_u32_u24 v42, 5462, v42
    v_mul_u32_u24 v43, 5462, v43
    v_cndmask_b32 v46, v46, v47, vcc
    v_cndmask_b32 v47, v47, v45, vcc
    v_lshrrev_b32 v42, 16, v42
    v_lshrrev_b32 v43, 16, v43
    v_min_u32 v42, 63, v42
    v_min_u32 v43, 63, v43
    v_lshl_add_u32 v46, v46, 6, v42
    v_lshl_add_u32 v47, v47, 6, v43
    v_add_u32 v32, s56, v46
    v_add_u32 v34, s56, v47
    v_mov_b32 v35, s57
    s_lshl_b32 s38, s2, 8
    s_add_u32 s38, s38, {WS_ROW}
    v_lshl_or_b32 v1, v126, 16, v{IDX+1}
    v_add_u32 v1, s38, v1
    PREC:
    v_lshrrev_b32 v58, 5, v124
    s_lshl_b32 s38, s33, 5
    v_lshl_or_b32 v58, v58, 4, v125
    s_lshl_b32 s39, s34, 16
    v_or_b32 v58, s38, v58
    s_lshl3_add_u32 s39, s32, s39
    s_add_u32 s39, s39, {WS_ROW}
    v_mul_u32_u24 v60, {RS}, v58
    v_and_b32 v61, 1, v58
    v_lshl_add_u32 v59, v58, 8, s39
    v_mul_u32_u24 v61, 384, v61
    v_cmp_gt_u32 vcc, {NCH}, v58
    v_sub_u32 v60, v60, v61
    v_and_b32 v61, 31, v0
    v_mov_b32 v56, 0
    v_mul_u32_u24 v63, 12, v61
    v_not_b32 v61, v61
    v_xor_b32 v62, 31, v61
    v_mov_b32 v106, 2
    s_mov_b64 s[38:39], vcc
    s_add_u32 s8, s24, {WS_REC}
    s_addc_u32 s9, s25, 0
    s_mov_b32 s10, {(NCH+1)*RS}
    s_mov_b32 s11, s7
    s_mov_b64 s[58:59], 0x80000
    s_movk_i32 s57, {tmo}
    s_movk_i32 s60, 8100
    s_lshl_b32 s56, s33, 8
    s_add_u32 s56, s56, s2
    s_cmp_ge_u32 s56, {NCH}
    s_waitcnt vmcnt(0) lgkmcnt(0)
    @st e
    s_cbranch_scc1 PR0
    global_store_dwordx4 v1, v[32:35], s[24:25] sc1
    {'s_waitcnt vmcnt(0)' if g('rw', 0) else ''}
    s_setprio 0
    PR0:
    s_barrier
    @st f
    ds_read_b64 v[120:121], v23 offset:{TL}
    ds_read_b64 {vr(WC,2)}, v{vWc} offset:{WCL}
    s_mov_b64 exec, s[38:39]
    RP:
    global_load_dwordx2 v[56:57], v59, s[24:25] sc1
    s_sub_u32 s57, s57, 1
    s_cbranch_scc1 RTO
    s_waitcnt vmcnt(0) lgkmcnt(0)
    v_xor_b32 v56, v120, v56
    v_xor_b32 v57, v121, v57
    v_cmp_le_u64 vcc, s[58:59], v[56:57]
    s_and_b64 exec, exec, vcc
    s_cbranch_scc1 RP
    s_mov_b64 exec, -1
    RP1:
    @st g
    v_lshrrev_b32 v57, 6, v56
    v_and_b32 v56, 63, v56
    v_add_u32 v57, v57, v60
    s_nop 0
    """)
    RR = [64+4*p for p in range(8)]
    for p in range(8):
        mk = f"s[{40+2*p}:{41+2*p}]"
        o(f"""
        v_add_co_u32_dpp v97, vcc, v56, v62 row_newbcast:{2*p+1} {DPP}
        v_add_u32_dpp v96, v57, v63 row_newbcast:{2*p} {DPP}
        s_mov_b64 {mk}, vcc
        v_add_co_u32_dpp v97, vcc, v56, v61 row_newbcast:{2*p} {DPP}
        v_add_u32_dpp v{RR[p]+3}, v57, v63 row_newbcast:{2*p+1} {DPP}
        s_or_b64 exec, {mk}, vcc
        v_cndmask_b32 v{RR[p]+3}, v{RR[p]+3}, v96, vcc
        buffer_load_dwordx3 {vr(RR[p],3)}, v{RR[p]+3}, s[8:11], 0 offen sc1
        s_or_saveexec_b64 {mk}, -1
        """)
    o(f"""
    v_add_u32_dpp v57, v56, v56 quad_perm:[1,0,3,2] {DPP}
    v_cmp_lt_u32 vcc, 32, v57
    s_cbranch_vccnz ROV
    ROV1:
    """)
    seq = []
    def atom(p):
        o(f"""
        s_mov_b64 exec, s[{40+2*p}:{41+2*p}]
        s_waitcnt vmcnt({7-p})
        v_lshrrev_b32 v{RR[p]+3}, 16, v{RR[p]+2}
        {f'v_and_b32 v{RR[p]+3}, 0x1fc, v{RR[p]+3}' if g('safe', 0) else ''}
        ds_add_rtn_u32 v{RR[p]+3}, v{RR[p]+3}, v106 offset:{CNT}
        """)
    def lwrite(p, w):
        o(f"s_mov_b64 exec, s[{40+2*p}:{41+2*p}]")
        if w is not None: o(f"s_waitcnt lgkmcnt({w})")
        o(f"""
        v_min_u32 v{RR[p]+3}, s60, v{RR[p]+3}
        v_lshl_add_u32 v{98+p}, v{RR[p]+3}, 2, s37
        ds_write_b16 v{RR[p]+3}, v{RR[p]+2} offset:{SRC}
        ds_write_b64 v{98+p}, {vr(RR[p],2)}
        """)
    atom(0); o("@st h")
    for p in range(1, 8):
        atom(p)
        if p-1 < nb: lwrite(p-1, 1 if p == 1 else 3)
    o(f"""
    s_mov_b64 exec, -1
    s_mov_b32 m0, 0
    s_waitcnt lgkmcnt({2 if nb == 7 else 0})
    s_barrier
    @st i
    ds_read_addtid_b32 v110 offset:{CNT}
    ds_read_b32 v111, v{vC4} offset:{CNT+256}
    """)
    for p in range(nb, 8): lwrite(p, None)
    o(f"""
    s_mov_b64 exec, -1
    s_waitcnt lgkmcnt({min(15, 2*(8-nb))})
    SORT:
    v_cmp_gt_i32 s[50:51], v110, v{vT0}
    v_cmp_gt_i32 s[54:55], v111, v{vT2}
    v_cmp_gt_i32 s[52:53], v110, v{vT1}
    v_sub_u32_sdwa v110, v110, v{vE1} dst_sel:DWORD dst_unused:UNUSED_PAD src0_sel:DWORD src1_sel:WORD_0
    v_sub_u32_sdwa v111, v111, v{vE2} dst_sel:DWORD dst_unused:UNUSED_PAD src0_sel:DWORD src1_sel:WORD_0
    s_bcnt1_i32_b64 s46, s[50:51]
    s_lshl_b32 s55, s54, 16
    s_bcnt1_i32_b32 s47, s55
    s_andn2_b32 s54, s54, s55
    s_andn2_b64 s[50:51], s[52:53], s[50:51]
    s_add_u32 s46, s46, s47
    s_bcnt1_i32_b64 s48, s[52:53]
    s_add_u32 s47, s47, s48
    v_mbcnt_lo_u32_b32 v112, s50, 0
    v_mbcnt_lo_u32_b32 v113, s54, 0
    v_mbcnt_hi_u32_b32 v112, s51, v112
    v_add_lshl_u32 v113, v113, s48, 2
    v_add_lshl_u32 v112, v112, s46, 2
    v_and_b32 v115, -16, v113
    v_and_b32 v114, -16, v112
    s_mov_b64 exec, s[50:51]
    ds_write_b32 v112, v{vE1} offset:{ORDER}
    ds_max_u32 v114, v110 offset:{JOBC}
    s_and_b32 exec_lo, s54, 0xffff0000
    s_mov_b32 exec_hi, 0
    ds_write_b32 v113, v{vE2} offset:{ORDER}
    ds_max_u32 v115, v111 offset:{JOBC}
    s_mov_b64 exec, -1
    s_cmp_eq_u32 s33, 0
    s_cselect_b32 s46, s46, 0
    s_cmp_lg_u32 s46, 0
    s_cbranch_scc1 SOV
    SOV1:
    """.replace("    s_add_u32 s47, s47, s48\n", ""))
    if prio: o("s_cmp_lt_u32 s33, 4\ns_cselect_b32 s44, 0, 2\ns_cselect_b32 s43, 0, 3\ns_setprio 2\ns_cbranch_scc0 K2E\ns_setprio 3\nK2E:")
    o(f"""
    s_waitcnt lgkmcnt(0)
    s_barrier
    @st j
    """)
    jobs(o, P, prio, gs)
    o("RTO:\ns_waitcnt vmcnt(0)\nv_mov_b32 v56, 0"); setflag(o, 0x10000); o("s_branch RP1")
    o("ROV:"); setflag(o, 0x10000); o("s_waitcnt lgkmcnt(0)\ns_branch ROV1")
    o("SOV:"); setflag(o, 0x10000); o("s_branch SOV1")
    o("FTO:\ns_waitcnt vmcnt(0)"); setflag(o, 0x20000); o("s_branch FP1")
    slow(o)
    prof_end(o, P, 0)
    return o.text()
exec(open("jobs.py").read())
```
